```python
import torch

def _softmax(x, axis=-1):
    return torch.softmax(x, dim=axis)
def _gelu(x):
    return torch.nn.functional.gelu(x, approximate="tanh")
def _silu(x):
    return torch.nn.functional.silu(x)
def _sigmoid(x):
    return torch.sigmoid(x)
def _layernorm(x, axis=-1, eps=1e-5):
    m = x.mean(dim=axis, keepdim=True)
    v = x.var(dim=axis, keepdim=True, unbiased=False)
    return (x - m) / torch.sqrt(v + eps)
def _scatter_add(tgt, idx, src, axis=0):
    return tgt.clone().index_add_(axis, idx, src)
def _segment_sum(src, seg, n):
    out = torch.zeros((n,) + src.shape[1:], dtype=src.dtype)
    return out.index_add_(0, seg, src)
def _pad(x, pw):
    flat = tuple(v for pair in reversed(pw) for v in pair)
    return torch.nn.functional.pad(x, flat)

kernel_name = 'gated_mix__softmax_full_mha__mixer_token_mlp__prompt'

def setup_inputs():

    _w = (lambda a: (lambda t: t.to(torch.bfloat16) if t.is_floating_point() else t)(torch.as_tensor(a)))
    def _A_setup():
        B, S, D = 1, 2048, 576
        return {
            "x": _w((lambda *s: torch.randn(*s, dtype=torch.bfloat16) * 0.05)(B, S, D)),
            "wqkv": _w((lambda *s: torch.randn(*s, dtype=torch.bfloat16) * 0.8)(D, 3 * D)),
            "wo": _w((lambda *s: torch.randn(*s, dtype=torch.bfloat16) * 0.05)(D, D)),
        }
    _A_in = _A_setup()

    def _B_setup():
        B, S, D, F = 1, 2048, 576, 4608
        return {
            "x": _w((lambda *s: torch.randn(*s, dtype=torch.bfloat16) * 0.05)(B, S, D)),
            "w1": _w((lambda *s: torch.randn(*s, dtype=torch.bfloat16) * 0.8)(S, F) * (S ** -0.5)),
            "b1": _w((lambda *s: torch.randn(*s, dtype=torch.bfloat16) * 12.8)(F) * 0.02),
            "w2": _w((lambda *s: torch.randn(*s, dtype=torch.bfloat16) * 0.1)(F, S) * (F ** -0.5)),
            "b2": _w((lambda *s: torch.randn(*s, dtype=torch.bfloat16) * 1.6)(S) * 0.02),
        }
    _B_in = _B_setup()

    return {
        "A_x": _A_in["x"],
        "A_wqkv": _A_in["wqkv"],
        "A_wo": _A_in["wo"],
        "B_x": _B_in["x"],
        "B_w1": _B_in["w1"],
        "B_b1": _B_in["b1"],
        "B_w2": _B_in["w2"],
        "B_b2": _B_in["b2"],
        "gate_w": _w((lambda *s: torch.randn(*s, dtype=torch.bfloat16) * 0.05)(576) * 16.0),
    }

def reference(A_x, A_wqkv, A_wo, B_x, B_w1, B_b1, B_w2, B_b2, gate_w):
    def _A_ref(x, wqkv, wo):
        B, S, D = x.shape
        H = 32; Dh = D // H
        qkv = (lambda x, *d: x.permute(*d))((x @ wqkv).reshape(B, S, 3, H, Dh), 2, 0, 3, 1, 4)
        q, k, v = qkv[0], qkv[1], qkv[2]
        scale = Dh ** -0.5
        scores = torch.einsum("bhqd,bhkd->bhqk", q, k) * scale
        p = _softmax(scores, axis=-1)
        o = torch.einsum("bhqk,bhkd->bhqd", p, v)
        return (lambda x, *d: x.permute(*d))(o, 0, 2, 1, 3).reshape(B, S, D) @ wo

    def _B_ref(x, w1, b1, w2, b2):
        B, S, D = x.shape
        h = _layernorm(x, axis=-1)
        u = torch.einsum("bsd,sf->bdf", h, w1) + b1
        u = _gelu(u)
        y = torch.einsum("bdf,fs->bds", u, w2) + b2
        return (lambda x, *d: x.permute(*d))(y, 0, 2, 1)

    x = A_x
    g = _sigmoid((x * gate_w).sum(-1, keepdims=True))
    a = _A_ref(x, A_wqkv, A_wo)
    b = _B_ref(x, B_w1, B_b1, B_w2, B_b2)
    return g * a + (1 - g) * b
```

```python
import re

TRANS = ("v_exp_f32", "v_log_f32", "v_rcp_f32", "v_rsq_f32", "v_sqrt_f32", "v_sin_f32", "v_cos_f32", "v_rcp_iflag_f32")

def _regs(tok):
    tok = tok.strip()
    tok = re.sub(r"^(-|abs\(|\|)+", "", tok).rstrip(")|")
    m = re.fullmatch(r"([vas])(\d+)", tok)
    if m: return {(m.group(1), int(m.group(2)))}
    m = re.fullmatch(r"([vas])\[(\d+):(\d+)\]", tok)
    if m: return {(m.group(1), i) for i in range(int(m.group(2)), int(m.group(3)) + 1)}
    if tok in ("vcc", "vcc_lo", "vcc_hi"): return {("s", "vcc")}
    if tok in ("exec", "exec_lo", "exec_hi"): return {("s", "exec")}
    if tok == "m0": return {("s", "m0")}
    return set()

class Ins:
    __slots__ = ("text", "op", "kind", "w", "r", "mf_a", "mf_c", "passes", "nopw", "stdata", "dpp", "isdma", "lanesel")
    def __init__(self, text):
        self.text = text
        t = text.split(";")[0].strip()
        parts = t.split(None, 1)
        self.op = op = parts[0]
        rest = parts[1] if len(parts) > 1 else ""
        ops = [x.strip() for x in re.split(r",(?![^\[]*\])", rest)] if rest else []
        mods = ""
        if ops:
            last = ops[-1].split(None, 1)
            ops[-1] = last[0]
            mods = last[1] if len(last) > 1 else ""
        self.w = set(); self.r = set(); self.mf_a = set(); self.mf_c = set(); self.passes = 0
        self.nopw = 1; self.stdata = set(); self.dpp = False; self.isdma = False; self.lanesel = set()
        if op == "s_nop":
            self.kind = "nop"; self.nopw = int(ops[0], 0) + 1
        elif op.startswith("v_mfma"):
            self.kind = "mfma"
            self.w = _regs(ops[0]); self.mf_a = _regs(ops[1]) | _regs(ops[2]); self.mf_c = _regs(ops[3])
            self.r = self.mf_a | self.mf_c
            self.passes = 8 if "32x32" in op else 4
        elif op.startswith("v_"):
            self.kind = "valu"
            self.dpp = ("quad_perm" in mods or "row_" in mods or "wave_" in mods)
            if op.startswith("v_permlane") and "swap" in op:
                self.w = _regs(ops[0]) | _regs(ops[1]); self.r = set(self.w)
            elif op.startswith("v_cmp"):
                self.w = _regs(ops[0])
                for o in ops[1:]: self.r |= _regs(o)
            elif re.match(r"v_(add|sub|subrev|addc|subb)_co_u32", op) or op.startswith("v_div_scale") or op.startswith("v_mad_u64"):
                self.w = _regs(ops[0]) | _regs(ops[1])
                for o in ops[2:]: self.r |= _regs(o)
            else:
                self.w = _regs(ops[0])
                for o in ops[1:]: self.r |= _regs(o)
                if op.startswith("v_fmac") or op.startswith("v_writelane") or self.dpp or "sdwa" in op or op.startswith("v_pk_fmac"):
                    self.r |= self.w
                if op.startswith(("v_readlane", "v_writelane")): self.lanesel = _regs(ops[2])
        elif op.startswith(("buffer_", "global_")):
            self.kind = "vmem"
            lds = " lds" in (" " + mods) or "_lds_" in op
            self.isdma = lds
            if op.startswith("buffer_inv") or op.startswith("buffer_wbl2"):
                pass
            elif "load" in op and not lds:
                self.w = _regs(ops[0])
                for o in ops[1:]: self.r |= _regs(o)
            else:
                for o in ops: self.r |= _regs(o)
                if ("store" in op) and ("x3" in op or "x4" in op):
                    self.stdata = _regs(ops[0]) if op.startswith("buffer_") else _regs(ops[1])
                if "atomic" in op and "sc0" in mods: self.w = _regs(ops[0])
            if lds: self.r |= {("s", "m0")}
        elif op.startswith("ds_"):
            self.kind = "ds"
            if "read" in op or "permute" in op or "swizzle" in op or "_rtn" in op:
                self.w = _regs(ops[0])
                for o in ops[1:]: self.r |= _regs(o)
            else:
                for o in ops: self.r |= _regs(o)
        elif op.startswith("s_"):
            self.kind = "salu"
            if op.startswith(("s_cmp", "s_waitcnt", "s_barrier", "s_branch", "s_cbranch", "s_endpgm", "s_setprio", "s_sleep", "s_bitcmp")):
                for o in ops: self.r |= _regs(o)
            else:
                self.w = _regs(ops[0]) if ops else set()
                for o in ops[1:]: self.r |= _regs(o)
                if "saveexec" in op: self.w |= {("s", "exec")}
        else:
            raise ValueError("unknown instr: " + text)

def need(p, c):
    n = 0
    vw = {x for x in p.w if x[0] in "va"}
    sw = {x for x in p.w if x[0] == "s"}
    if p.kind == "valu":
        if c.kind == "mfma" and vw & c.r: n = max(n, 2)
        if c.kind == "valu":
            if p.op.startswith(TRANS) and not c.op.startswith(TRANS) and vw & c.r: n = max(n, 1)
            if ("sdwa" in p.op or "op_sel" in p.text) and vw & (c.r | c.w): n = max(n, 1)
            if c.op.startswith(("v_readfirstlane", "v_readlane")) and vw & c.r: n = max(n, 1)
            if c.op.startswith("v_permlane") and vw & c.r: n = max(n, 2)
            if c.dpp and vw & c.r: n = max(n, 2)
            if sw & c.r: n = max(n, 2)
            if sw & c.lanesel: n = max(n, 4)
            if c.op.startswith("v_div_fmas") and ("s", "vcc") in sw: n = max(n, 4)
        if c.kind == "vmem" and sw & c.r: n = max(n, 5)
        if c.kind == "salu" and sw & c.r: n = max(n, 1)
        if ("s", "exec") in sw: n = max(n, 5)
    if p.kind == "mfma":
        big = 12 if p.passes == 8 else 8
        if c.kind == "mfma":
            if vw & c.mf_a: n = max(n, big)
            if vw & c.mf_c and not (vw == c.mf_c and p.passes == c.passes): n = max(n, big - 2)
            if vw & c.w and p.passes != c.passes: n = max(n, big)
        elif c.kind in ("valu", "vmem", "ds"):
            if vw & (c.r | c.w): n = max(n, big)
        if c.kind == "valu" and p.mf_c & c.w: n = max(n, 7 if p.passes == 8 else 3)
    if p.kind == "vmem" and p.stdata:
        if p.stdata & c.w: n = max(n, 2 if c.kind == "valu" else 1)
    if p.kind == "salu" and ("s", "m0") in sw and c.isdma: n = max(n, 1)
    return n

class Asm:
    def __init__(self):
        self.lines = []
        self._lab = 0
    def __call__(self, text):
        for ln in text.split("\n"):
            ln = ln.strip()
            if not ln: continue
            if ln.startswith((";", ".")) or ln.endswith(":"):
                self.lines.append(ln)
            else:
                self.lines.append(Ins(ln))
    def label(self, base="L"):
        self._lab += 1
        return f"{base}_{self._lab}"
    def fix_hazards(self, verbose=False):
        out = []; hist = []
        nins = 0
        for x in self.lines:
            if isinstance(x, str):
                out.append(x); continue
            req = 0; dist = 0
            for p in reversed(hist[-16:]):
                n = need(p, x)
                if n > dist: req = max(req, n - dist)
                dist += p.nopw
                if dist >= 16: break
            if req:
                nop = Ins(f"s_nop {req - 1}")
                out.append(nop); hist.append(nop); nins += 1
                if verbose: print("  nop", req, "before", x.text)
            out.append(x); hist.append(x)
            if x.op in ("s_endpgm", "s_branch"): hist = []
        self.lines = out
        labpos = {x[:-1]: i for i, x in enumerate(out) if isinstance(x, str) and x.endswith(":")}
        for i, x in enumerate(out):
            if isinstance(x, Ins) and x.op.startswith(("s_branch", "s_cbranch")):
                tgt = x.text.split(";")[0].split()[1]
                j = labpos[tgt]
                before = [y for y in out[max(0, i - 40):i + 1] if isinstance(y, Ins)][-16:]
                after = [y for y in out[j:j + 40] if isinstance(y, Ins)][:16]
                d0 = 0
                for c in after:
                    dist = d0
                    for p in reversed(before):
                        n = need(p, c)
                        if n > dist:
                            raise RuntimeError(f"hazard across branch to {tgt}: {p.text} -> {c.text} need {n} have {dist}")
                        dist += p.nopw
                    d0 += c.nopw
                    if c.op in ("s_endpgm", "s_branch"): break
        return nins
    def text(self):
        return "\n".join(x if isinstance(x, str) else "  " + x.text for x in self.lines) + "\n"

class RegAlloc:
    def __init__(self, kind, start, limit):
        self.kind = kind; self.next = start; self.limit = limit; self.hi = start
    def alloc(self, n=1, align=1):
        b = (self.next + align - 1) // align * align
        self.next = b + n
        assert self.next <= self.limit, f"out of {self.kind} regs: {self.next} > {self.limit}"
        self.hi = max(self.hi, self.next)
        return b
    def mark(self): return self.next
    def release(self, m): self.next = m

def R(kind, b, n=1):
    return f"{kind}{b}" if n == 1 else f"{kind}[{b}:{b + n - 1}]"
def V(b, n=1): return R("v", b, n)
def A(b, n=1): return R("a", b, n)
def S(b, n=1): return R("s", b, n)
```

```python
from common import *
from pgemm import common_setup

ATT_BUF = 20480
ATT_LDS = 4 * ATT_BUF

def body_attn(a, va, sid):
    NQ = 2
    sWS = 16
    sWave, sHead, sQg, sKV, sSrc, sM0, sCnt, sT0, sT1, sT2, sKb, sVb, sDb, sFlag, sTb = range(20, 35)
    load_srd(a, sWS, "ws", 0)
    lane, hh, l31, t = common_setup(a, va, sWave)
    a(f"s_and_b32 {S(sHead)}, {S(sid)}, 7\ns_lshl_b32 {S(sHead)}, {S(sHead)}, 2\ns_lshr_b32 {S(sT0)}, {S(sid)}, 6\ns_add_u32 {S(sHead)}, {S(sHead)}, {S(sT0)}")
    a(f"s_bfe_u32 {S(sQg)}, {S(sid)}, 0x30003")
    a(f"s_lshl_b32 {S(sTb)}, {S(sQg)}, 3\ns_lshl_b32 {S(sT0)}, {S(sWave)}, 1\ns_add_u32 {S(sTb)}, {S(sTb)}, {S(sT0)}")
    a(f"s_mul_i32 {S(sKV)}, {S(sHead)}, {KVH}\ns_add_u32 {S(sKV)}, {S(sKV)}, {WS_KV}")
    a(f"s_lshl_b32 {S(sM0)}, {S(sWave)}, 10\ns_add_u32 {S(sSrc)}, {S(sKV)}, {S(sM0)}")
    vL = va.alloc(); vK0t = va.alloc(); vV0 = va.alloc(); vK = va.alloc(); vKt = va.alloc(); vV = va.alloc(); vQt = va.alloc(); msk = va.alloc()
    Qm = va.alloc(4*NQ, 4); Qt = va.alloc(4*NQ, 4); O = va.alloc(16*NQ, 4); Sb = va.alloc(32, 4); P = va.alloc(8, 4)
    Km = va.alloc(4, 4); Kt = va.alloc(4, 4); V0 = va.alloc(4, 4); V1 = va.alloc(4, 4); mx = va.alloc(2)
    a(f"v_lshlrev_b32 {V(vL)}, 4, {V(lane)}")
    a(f"v_lshlrev_b32 {V(vK0t)}, 2, {V(l31)}")
    a(f"v_cmp_gt_u32 vcc, 32, {V(lane)}\nv_mov_b32 {V(t)}, {OOB}\nv_cndmask_b32 {V(vQt)}, {V(t)}, {V(vK0t)}, vcc\nv_cndmask_b32 {V(msk)}, 0, -1, vcc")
    a(f"v_add_u32 {V(vK0t)}, 8192, {V(vK0t)}")
    a(f"v_min_u32 {V(t)}, 18, {V(l31)}\nv_mul_u32_u24 {V(t+1)}, 320, {V(hh)}\nv_lshl_add_u32 {V(vV0)}, {V(t)}, 4, {V(t+1)}\nv_add_u32 {V(vV0)}, 9216, {V(vV0)}")
    a("s_waitcnt lgkmcnt(0)")
    fin_srd(a, sWS, "ws")
    a(f"s_lshl_b32 {S(sT0)}, {S(sHead)}, 6\ns_add_u32 {S(sT0)}, {S(sT0)}, {S(sTb)}\ns_lshl_b32 {S(sT1)}, {S(sT0)}, 7\ns_lshl_b32 {S(sT0)}, {S(sT0)}, 10")
    a(f"s_add_u32 {S(sT0)}, {S(sT0)}, {WS_QF}\ns_add_u32 {S(sT1)}, {S(sT1)}, {WS_QT}")
    for q in range(NQ):
        a(f"buffer_load_dwordx4 {V(Qm+4*q,4)}, {V(vL)}, {S(sWS,4)}, {S(sT0)} offen offset:{q*1024}")
        a(f"buffer_load_dword {V(Qt+4*q)}, {V(vQt)}, {S(sWS,4)}, {S(sT1)} offen offset:{q*128}")
    def dma_chunk():
        a(f"s_add_u32 {S(sT2)}, {S(sDb)}, {S(sM0)}")
        for i in range(5):
            a(f"s_add_u32 m0, {S(sT2)}, {i*4096}")
            if i: a(f"s_add_u32 {S(sT0)}, {S(sSrc)}, {i*4096}")
            a(f"buffer_load_dwordx4 {V(vL)}, {S(sWS,4)}, {S(sT0 if i else sSrc)} offen lds")
        a(f"s_add_u32 {S(sSrc)}, {S(sSrc)}, {KVCH}")
    def wrap(s):
        a(f"s_add_u32 {S(s)}, {S(s)}, {ATT_BUF}\ns_cmp_eq_u32 {S(s)}, {ATT_LDS}\ns_cselect_b32 {S(s)}, 0, {S(s)}")
    a(f"s_mov_b32 {S(sDb)}, 0")
    for c in range(3):
        dma_chunk(); wrap(sDb)
    for q in range(NQ):
        for i in range(1, 4): a(f"v_mov_b32 {V(Qt+4*q+i)}, 0")
    a(f"v_mov_b32 {V(Kt+1)}, 0x3f803f80\nv_mov_b32 {V(Kt+2)}, 0x3f80\nv_mov_b32 {V(Kt+3)}, 0")
    for i in range(16*NQ): a(f"v_mov_b32 {V(O+i)}, 0")
    for i in range(4): a(f"v_mov_b32 {V(V1+i)}, 0\nv_mov_b32 {V(P+4+i)}, 0")
    a(f"v_mov_b32 {V(vK)}, {V(vL)}\nv_mov_b32 {V(vKt)}, {V(vK0t)}\nv_mov_b32 {V(vV)}, {V(vV0)}")
    a(f"s_mov_b32 {S(sKb)}, 0\ns_mov_b32 {S(sFlag)}, 0")
    a("s_waitcnt vmcnt(10)\ns_barrier")
    a(f"ds_read_b128 {V(Km,4)}, {V(vK)}\nds_read_b32 {V(Kt)}, {V(vKt)}\nds_read_b128 {V(V0,4)}, {V(vV)}")
    a("s_waitcnt lgkmcnt(1)")
    def smfma(buf, q):
        return mfma(Sb+16*buf, Km, Qm+4*q, "0"), mfma(Sb+16*buf, Kt, Qt+4*q)
    def rowmax(buf, dst, init):
        b = Sb + 16*buf
        if init:
            a(f"v_max3_f32 {V(dst)}, {V(b)}, {V(b+1)}, {V(b+2)}")
            for i in range(3, 15, 2): a(f"v_max3_f32 {V(dst)}, {V(dst)}, {V(b+i)}, {V(b+i+1)}")
            a(f"v_max_f32 {V(dst)}, {V(dst)}, {V(b+15)}")
        else:
            for i in range(0, 16, 2): a(f"v_max3_f32 {V(dst)}, {V(dst)}, {V(b+i)}, {V(b+i+1)}")
    def setm(q):
        m = mx + q
        a(f"v_mov_b32 {V(t)}, {V(m)}\nv_permlane32_swap_b32 {V(m)}, {V(t)}\nv_max_f32 {V(m)}, {V(m)}, {V(t)}")
        a(f"v_sub_f32 {V(m)}, 0, {V(m)}")
        a(f"v_and_b32 {V(t)}, 0xffff0000, {V(m)}\nv_sub_f32 {V(m)}, {V(m)}, {V(t)}")
        a(f"v_and_b32 {V(t+1)}, 0xffff0000, {V(m)}\nv_sub_f32 {V(m)}, {V(m)}, {V(t+1)}")
        a(f"v_lshrrev_b32 {V(t)}, 16, {V(t)}\nv_or_b32 {V(t)}, {V(t)}, {V(t+1)}\nv_and_b32 {V(Qt+4*q+1)}, {V(t)}, {V(msk)}")
        a(f"v_lshrrev_b32 {V(m)}, 16, {V(m)}\nv_and_b32 {V(Qt+4*q+2)}, {V(m)}, {V(msk)}")
    for q in range(NQ):
        for m in smfma(q, q): a(m)
    for q in range(NQ):
        rowmax(q, mx+q, True); setm(q)
    for m in smfma(0, 0): a(m)
    a("s_nop 7")
    a(f"s_mov_b32 {S(sCnt)}, 0")
    L = a.label("ATT")
    a(f".p2align 4\n{L}:")
    for u in range(16):
        tl, q = divmod(u, 2)
        b = Sb + 16*(u % 2)
        e = lambda i: f"v_exp_f32 {V(b+i)}, {V(b+i)}"
        c = lambda i: f"v_cvt_pk_bf16_f32 {V(P+i)}, {V(b+2*i)}, {V(b+2*i+1)}"
        g = [[e(0), e(1), e(2), c(0), e(3), e(4)], [c(1), e(5), e(6), c(2), e(7), e(8)],
             [c(3), e(9), e(10), c(4), e(11), e(12)], [c(5), e(13), e(14), e(15), c(6), c(7)]]
        s0, s1 = smfma((u+1) % 2, (q+1) % 2)
        pv1 = mfma(O+16*((q+1) % 2), V1, P+4)
        pv0 = mfma(O+16*q, V0, P)
        nt = (tl + 1) % 8
        if u == 14:
            a("s_waitcnt vmcnt(5)\ns_barrier")
            wrap(sKb)
            a(f"v_add_u32 {V(vK)}, {S(sKb)}, {V(vL)}\nv_add_u32 {V(vKt)}, {S(sKb)}, {V(vK0t)}")
        if q == 1: a("s_waitcnt lgkmcnt(2)")
        a(s0)
        if q == 0: a(f"ds_read_b128 {V(Km,4)}, {V(vK)} offset:{nt*1024}")
        for x in g[0]: a(x)
        if q == 1: a("s_waitcnt lgkmcnt(1)")
        a(s1)
        if q == 0: a(f"ds_read_b32 {V(Kt)}, {V(vKt)} offset:{nt*128}")
        if u == 14:
            a(f"s_cmp_ge_u32 {S(sCnt)}, 5\ns_cselect_b32 {S(sSrc)}, {OOB}, {S(sSrc)}")
            dma_chunk(); wrap(sDb)
        for x in g[1]: a(x)
        if q == 1: a("s_waitcnt lgkmcnt(0)")
        a(pv1)
        if q == 0: a(f"ds_read_b128 {V(V1,4)}, {V(vV)} offset:{tl*1280 + 640}")
        for x in g[2]: a(x)
        if q == 0: a("s_waitcnt lgkmcnt(3)")
        a(pv0)
        if u == 15: a(f"v_add_u32 {V(vV)}, {S(sKb)}, {V(vV0)}")
        if q == 1: a(f"ds_read_b128 {V(V0,4)}, {V(vV)} offset:{nt*1280}")
        for x in g[3]: a(x)
    a(f"s_add_u32 {S(sCnt)}, {S(sCnt)}, 1\ns_cmp_lt_u32 {S(sCnt)}, 8\ns_cbranch_scc1 {L}")
    a(mfma(O+16, V1, P+4))
    Lfin = a.label("ATTFIN"); Lfb = a.label("ATTFB")
    a("s_waitcnt vmcnt(0) lgkmcnt(0)")
    a(f"s_mov_b32 {S(sT0)}, {f32(2.0**40)}")
    a(f"v_cmp_nge_f32 vcc, {S(sT0)}, {V(O+10)}\nv_cmp_nge_f32 {S(40,2)}, {S(sT0)}, {V(O+26)}")
    a(f"s_nop 1\ns_or_b64 vcc, vcc, {S(40,2)}\ns_nop 4\ns_cbranch_vccnz {Lfb}")
    a(f"{Lfin}:")
    a(f"s_lshr_b32 {S(sT0)}, {S(sHead)}, 3\ns_mul_i32 {S(sT0)}, {S(sT0)}, 9\ns_mul_i32 {S(sT1)}, {S(sTb)}, 36\ns_add_u32 {S(sT0)}, {S(sT0)}, {S(sT1)}")
    a(f"s_add_u32 {S(sT1)}, {S(sT0)}, 8\ns_and_b32 {S(sT2)}, {S(sHead)}, 7\ns_add_u32 {S(sT0)}, {S(sT0)}, {S(sT2)}")
    a(f"s_lshl_b32 {S(sT0)}, {S(sT0)}, 10\ns_add_u32 {S(sT0)}, {S(sT0)}, {WS_OF}\ns_lshl_b32 {S(sT1)}, {S(sT1)}, 10\ns_add_u32 {S(sT1)}, {S(sT1)}, {WS_OF}")
    a(f"s_bfe_u32 {S(sT2)}, {S(sHead)}, 0x10002\ns_lshl_b32 {S(sT2)}, {S(sT2)}, 9\ns_add_u32 {S(sT1)}, {S(sT1)}, {S(sT2)}")
    a(f"s_and_b32 {S(sT2)}, {S(sHead)}, 3\ns_lshl_b32 {S(sT2)}, {S(sT2)}, 2\ns_add_u32 {S(sT1)}, {S(sT1)}, {S(sT2)}")
    a(f"v_cmp_gt_u32 vcc, 32, {V(lane)}\nv_mov_b32 {V(t)}, {OOB}\nv_cndmask_b32 {V(t+1)}, {V(t)}, {V(vL)}, vcc")
    for q in range(NQ):
        o = O + 16*q
        a(f"v_rcp_f32 {V(t)}, {V(o+10)}")
        for i in range(10): a(f"v_mul_f32 {V(o+i)}, {V(o+i)}, {V(t)}")
        for i in range(4): a(f"v_cvt_pk_bf16_f32 {V(o+12+i)}, {V(o+2*i)}, {V(o+2*i+1)}")
        a(f"v_cvt_pk_bf16_f32 {V(o+11)}, {V(o+8)}, {V(o+9)}")
        a(f"buffer_store_dwordx4 {V(o+12,4)}, {V(vL)}, {S(sWS,4)}, {S(sT0)} offen")
        a(f"buffer_store_dword {V(o+11)}, {V(t+1)}, {S(sWS,4)}, {S(sT1)} offen")
        if q + 1 < NQ: a(f"s_add_u32 {S(sT0)}, {S(sT0)}, {36*1024}\ns_add_u32 {S(sT1)}, {S(sT1)}, {36*1024}")
    a("s_endpgm")
    a(f"{Lfb}:")
    def tile_off():
        a(f"s_lshr_b32 {S(sT0)}, {S(sCnt)}, 3\ns_mul_i32 {S(sT0)}, {S(sT0)}, {KVCH}\ns_add_u32 {S(sT0)}, {S(sT0)}, {S(sKV)}\ns_and_b32 {S(sT2)}, {S(sCnt)}, 7")
        a(f"s_lshl_b32 {S(sT1)}, {S(sT2)}, 10\ns_add_u32 {S(sT1)}, {S(sT1)}, {S(sT0)}")
        a(f"buffer_load_dwordx4 {V(Km,4)}, {V(vL)}, {S(sWS,4)}, {S(sT1)} offen")
        a(f"s_lshl_b32 {S(sT1)}, {S(sT2)}, 7\ns_add_u32 {S(sT1)}, {S(sT1)}, {S(sT0)}")
        a(f"buffer_load_dword {V(Kt)}, {V(vK0t)}, {S(sWS,4)}, {S(sT1)} offen")
    for q in range(NQ):
        a(f"v_mov_b32 {V(Qt+4*q+1)}, 0\nv_mov_b32 {V(Qt+4*q+2)}, 0\nv_mov_b32 {V(mx+q)}, 0xff800000")
    for i in range(16*NQ): a(f"v_mov_b32 {V(O+i)}, 0")
    a(f"s_mov_b32 {S(sCnt)}, 0")
    L1 = a.label("ATTF1"); L2 = a.label("ATTF2")
    a(f"{L1}:")
    tile_off()
    a("s_waitcnt vmcnt(0)")
    for q in range(NQ):
        for m in smfma(q, q): a(m)
    for q in range(NQ): rowmax(q, mx+q, False)
    a(f"s_add_u32 {S(sCnt)}, {S(sCnt)}, 1\ns_cmp_lt_u32 {S(sCnt)}, 64\ns_cbranch_scc1 {L1}")
    for q in range(NQ): setm(q)
    a(f"s_mov_b32 {S(sCnt)}, 0")
    a(f"{L2}:")
    tile_off()
    a(f"s_mul_i32 {S(sT1)}, {S(sT2)}, 1280\ns_add_u32 {S(sT1)}, {S(sT1)}, {S(sT0)}")
    a(f"buffer_load_dwordx4 {V(V0,4)}, {V(vV0)}, {S(sWS,4)}, {S(sT1)} offen")
    a(f"buffer_load_dwordx4 {V(V1,4)}, {V(vV0)}, {S(sWS,4)}, {S(sT1)} offen offset:640")
    a("s_waitcnt vmcnt(0)")
    for q in range(NQ):
        for m in smfma(q, q): a(m)
    for q in range(NQ):
        b = Sb + 16*q
        for i in range(16): a(f"v_exp_f32 {V(b+i)}, {V(b+i)}")
        for i in range(8): a(f"v_cvt_pk_bf16_f32 {V(P+i)}, {V(b+2*i)}, {V(b+2*i+1)}")
        a(mfma(O+16*q, V0, P)); a(mfma(O+16*q, V1, P+4))
    a(f"s_add_u32 {S(sCnt)}, {S(sCnt)}, 1\ns_cmp_lt_u32 {S(sCnt)}, 64\ns_cbranch_scc1 {L2}")
    a(f"s_nop 15\ns_branch {Lfin}")

def gen_attn(a, name="attn_kernel"):
    va = RegAlloc("v", 1, 256)
    kernel_begin(a, name)
    Lend = a.label("AEND")
    a(f"s_cmp_ge_u32 s2, 256\ns_cbranch_scc1 {Lend}")
    body_attn(a, va, 2)
    a(f"{Lend}:\ns_endpgm")
    return dict(name=name, grid=256, block=256, lds=ATT_LDS, desc=kernel_desc(name, va.hi, 0, 64))
```

```python
from asmlib import *
import math
S_, D_, H_, DH_, F_ = 2048, 576, 32, 18, 4608
KA = dict(x=0, wqkv=8, wo=16, w1=32, b1=40, w2=48, b2=56, gw=64, out=72, dbg=80, ws=88)
NB = dict(x=S_*D_*2, wqkv=D_*3*D_*2, wo=D_*D_*2, w1=S_*F_*2, b1=F_*2, w2=F_*S_*2, b2=S_*2, gw=D_*2, out=S_*D_*2, dbg=256)
WS_HT = 0
WS_U = WS_HT + 6*128*3*1024
WS_QF = WS_U + 6*288*3*1024
WS_QT = WS_QF + 32*64*1024
KVCH = 19456
KVH = 8*KVCH
WS_KV = WS_QT + 32*2048*4
WS_G = WS_KV + 32*KVH
WS_OF = WS_G + 2048*8
WS_T = WS_OF + 64*36*1024
WS_END = WS_T + 192*12*1024
NB["ws"] = WS_END
OOB = 0x40000000
QSCALE = math.log2(math.e) / math.sqrt(18.0)

import struct
def f32(x): return "0x%08x" % struct.unpack("<I", struct.pack("<f", x))[0]

class VmTrack:
    def __init__(self): self.q = []
    def issue(self, tag, n=1): self.q += [tag] * n
    def wait(self, tag):
        idx = max(i for i, t in enumerate(self.q) if t == tag)
        n = len(self.q) - 1 - idx
        self.q = self.q[idx + 1:]
        assert n <= 63, n
        return n

def load_srd(a, sreg, name, tmp):
    a(f"s_load_dwordx2 {S(sreg,2)}, s[0:1], {KA[name]}")
def fin_srd(a, sreg, name):
    a(f"s_and_b32 {S(sreg+1)}, {S(sreg+1)}, 0xffff")
    a(f"s_mov_b32 {S(sreg+2)}, {NB[name]}")
    a(f"s_mov_b32 {S(sreg+3)}, 0x20000")

def kernel_begin(a, name):
    a(f".globl {name}\n.p2align 8\n.type {name},@function\n{name}:")

def kernel_desc(name, nvgpr, nagpr=0, nsgpr=96):
    acc = (nvgpr + 3) // 4 * 4
    tot = acc + nagpr if nagpr else nvgpr
    return "\n".join([".p2align 6", f".amdhsa_kernel {name}", f"  .amdhsa_next_free_vgpr {tot}", f"  .amdhsa_next_free_sgpr {nsgpr}",
        f"  .amdhsa_accum_offset {acc}", "  .amdhsa_group_segment_fixed_size 0", "  .amdhsa_kernarg_size 96", "  .amdhsa_user_sgpr_count 2",
        "  .amdhsa_user_sgpr_kernarg_segment_ptr 1", "  .amdhsa_system_sgpr_workgroup_id_x 1", "  .amdhsa_float_denorm_mode_32 3",
        ".end_amdhsa_kernel"])

def mfma(d, x, y, c=None, acc="v"):
    cc = R(acc, d, 16) if c is None else c
    return f"v_mfma_f32_32x32x16_bf16 {R(acc, d, 16)}, {V(x,4)}, {V(y,4)}, {cc}"

def allreduce32(a, v, t, op="v_add_f32"):
    m = "row_mask:0xf bank_mask:0xf"
    a(f"{op}_dpp {V(v)}, {V(v)}, {V(v)} quad_perm:[1,0,3,2] {m}")
    a(f"{op}_dpp {V(v)}, {V(v)}, {V(v)} quad_perm:[2,3,0,1] {m}")
    a(f"{op}_dpp {V(v)}, {V(v)}, {V(v)} row_half_mirror {m}")
    a(f"{op}_dpp {V(v)}, {V(v)}, {V(v)} row_mirror {m}")
    a(f"v_mov_b32 {V(t)}, {V(v)}")
    a(f"v_permlane16_swap_b32 {V(v)}, {V(t)}")
    a(f"{op} {V(v)}, {V(v)}, {V(t)}")

def rnd_bf16(a, dst, src):
    a(f"v_cvt_pk_bf16_f32 {V(dst)}, {V(src)}, {V(src)}")
    a(f"v_and_b32 {V(dst)}, 0xffff0000, {V(dst)}")
```

```python
from common import *

X_LDS = 0
W_LDS = 65536
LN_LDS = W_LDS + 4*20480
LN_ROW = 1216
K1_LDS = LN_LDS + 8*LN_ROW + 512

def gen_k1(a, name="lnqkv_kernel"):
    va = RegAlloc("v", 1, 256)
    kernel_begin(a, name)
    Lend = a.label("K1END"); Lln = a.label("K1LNONLY"); Lv = a.label("K1V")
    sX, sW, sG, sWS = 4, 8, 12, 16
    sWave, sTg, sNg, sXoff, sWoff, sXm0, sWm0, sPart, sHg, sT0, sT1, sT2, sMain, sHs, sTail, sTs = range(20, 36)
    a(f"s_cmp_ge_u32 s2, 256\ns_cbranch_scc1 {Lend}")
    for r, n in ((sX, "x"), (sW, "wqkv"), (sG, "gw"), (sWS, "ws")): load_srd(a, r, n, 0)
    lane = va.alloc(); hh = va.alloc(); l31 = va.alloc(); t0 = va.alloc(); t1 = va.alloc(); t2 = va.alloc(); t3 = va.alloc()
    a(f"v_and_b32 {V(lane)}, 63, v0\nv_lshrrev_b32 {V(t0)}, 6, v0\nv_readfirstlane_b32 {S(sWave)}, {V(t0)}")
    a(f"v_lshrrev_b32 {V(hh)}, 5, {V(lane)}\nv_and_b32 {V(l31)}, 31, {V(lane)}")
    a("s_waitcnt lgkmcnt(0)")
    for r, n in ((sX, "x"), (sW, "wqkv"), (sG, "gw"), (sWS, "ws")): fin_srd(a, r, n)

    xr = va.alloc(9); gr = va.alloc(9)
    lnoff = va.alloc(); goff = va.alloc()
    a(f"s_lshl_b32 {S(sT0)}, {S(sWave)}, 1")
    a(f"v_add_u32 {V(t0)}, {S(sT0)}, {V(hh)}")
    a(f"v_mul_u32_u24 {V(lnoff)}, 1152, {V(t0)}")
    a(f"v_lshlrev_b32 {V(goff)}, 2, {V(l31)}")
    a(f"v_add_u32 {V(lnoff)}, {V(lnoff)}, {V(goff)}")
    a(f"s_mul_i32 {S(sT1)}, s2, 9216")
    for m in range(9): a(f"buffer_load_dword {V(xr+m)}, {V(lnoff)}, {S(sX,4)}, {S(sT1)} offen offset:{m*128}")
    for m in range(9): a(f"buffer_load_dword {V(gr+m)}, {V(goff)}, {S(sG,4)}, 0 offen offset:{m*128}")
    ltok = va.alloc()
    a(f"v_mov_b32 {V(ltok)}, {V(t0)}")

    def ln_body(vm, nafter):
        mk = va.mark()
        xf = va.alloc(18); acc = va.alloc(); acc2 = va.alloc(); gz = va.alloc(); tt = va.alloc(); mean = va.alloc(); rs = va.alloc()
        gg = va.alloc(2, 2); hb = va.alloc(9); wad = va.alloc(); rad = va.alloc(); tr = va.alloc(12, 4); sad = va.alloc(3)
        a(f"s_waitcnt vmcnt({nafter})")
        for m in range(9):
            a(f"v_lshlrev_b32 {V(xf+2*m)}, 16, {V(xr+m)}\nv_and_b32 {V(xf+2*m+1)}, 0xffff0000, {V(xr+m)}")
        a(f"v_add_f32 {V(acc)}, {V(xf)}, {V(xf+1)}")
        for i in range(2, 18): a(f"v_add_f32 {V(acc)}, {V(acc)}, {V(xf+i)}")
        a(f"v_mov_b32 {V(gz)}, 0")
        for m in range(9):
            a(f"v_lshlrev_b32 {V(t1)}, 16, {V(gr+m)}\nv_and_b32 {V(t2)}, 0xffff0000, {V(gr+m)}")
            a(f"v_mul_f32 {V(t1)}, {V(t1)}, {V(xf+2*m)}\nv_mul_f32 {V(t2)}, {V(t2)}, {V(xf+2*m+1)}")
            a(f"v_cvt_pk_bf16_f32 {V(t3)}, {V(t1)}, {V(t2)}")
            a(f"v_lshlrev_b32 {V(t1)}, 16, {V(t3)}\nv_and_b32 {V(t2)}, 0xffff0000, {V(t3)}")
            a(f"v_add_f32 {V(gz)}, {V(gz)}, {V(t1)}\nv_add_f32 {V(gz)}, {V(gz)}, {V(t2)}")
        allreduce32(a, acc, tt)
        allreduce32(a, gz, tt)
        a(f"v_mul_f32 {V(mean)}, {f32(1.0/576)}, {V(acc)}")
        a(f"v_mov_b32 {V(acc2)}, 0")
        for i in range(18):
            a(f"v_sub_f32 {V(t1)}, {V(xf+i)}, {V(mean)}\nv_fmac_f32 {V(acc2)}, {V(t1)}, {V(t1)}")
        allreduce32(a, acc2, tt)
        a(f"v_mul_f32 {V(acc2)}, {f32(1.0/576)}, {V(acc2)}")
        rnd_bf16(a, acc2, acc2)
        a(f"v_add_f32 {V(acc2)}, {f32(1e-5)}, {V(acc2)}")
        rnd_bf16(a, acc2, acc2)
        a(f"v_sqrt_f32 {V(acc2)}, {V(acc2)}")
        rnd_bf16(a, acc2, acc2)
        a(f"v_rcp_f32 {V(rs)}, {V(acc2)}")
        rnd_bf16(a, mean, mean)
        for m in range(9):
            a(f"v_sub_f32 {V(t1)}, {V(xf+2*m)}, {V(mean)}\nv_sub_f32 {V(t2)}, {V(xf+2*m+1)}, {V(mean)}")
            a(f"v_cvt_pk_bf16_f32 {V(t3)}, {V(t1)}, {V(t2)}")
            a(f"v_lshlrev_b32 {V(t1)}, 16, {V(t3)}\nv_and_b32 {V(t2)}, 0xffff0000, {V(t3)}")
            a(f"v_mul_f32 {V(t1)}, {V(t1)}, {V(rs)}\nv_mul_f32 {V(t2)}, {V(t2)}, {V(rs)}")
            a(f"v_cvt_pk_bf16_f32 {V(hb+m)}, {V(t1)}, {V(t2)}")
        a(f"v_mul_u32_u24 {V(wad)}, {LN_ROW}, {V(ltok)}")
        a(f"v_add_u32 {V(wad)}, {V(wad)}, {V(goff)}")
        a(f"v_add_u32 {V(wad)}, {LN_LDS}, {V(wad)}")
        for m in range(9): a(f"ds_write_b32 {V(wad)}, {V(hb+m)} offset:{m*128}")
        rnd_bf16(a, gz, gz)
        a(f"v_mul_f32 {V(gz)}, {f32(-math.log2(math.e))}, {V(gz)}")
        a(f"v_exp_f32 {V(gz)}, {V(gz)}")
        a(f"v_add_f32 {V(gz)}, 1.0, {V(gz)}")
        a(f"v_rcp_f32 {V(gz)}, {V(gz)}")
        rnd_bf16(a, gg, gz)
        a(f"v_sub_f32 {V(gg+1)}, 1.0, {V(gg)}")
        rnd_bf16(a, gg+1, gg+1)
        a(f"v_lshlrev_b32 {V(t1)}, 3, {V(ltok)}")
        a(f"s_lshl_b32 {S(sT0)}, s2, 6\ns_add_u32 {S(sT0)}, {S(sT0)}, {WS_G}")
        a(f"buffer_store_dwordx2 {V(gg,2)}, {V(t1)}, {S(sWS,4)}, {S(sT0)} offen"); vm.issue("lnst")
        a(f"v_bfe_u32 {V(t1)}, {V(lane)}, 2, 2\nv_mul_u32_u24 {V(rad)}, {LN_ROW}, {V(t1)}")
        a(f"v_lshrrev_b32 {V(t1)}, 4, {V(lane)}\nv_lshlrev_b32 {V(t1)}, 5, {V(t1)}\nv_add_u32 {V(rad)}, {V(rad)}, {V(t1)}")
        a(f"v_and_b32 {V(t1)}, 3, {V(lane)}\nv_lshlrev_b32 {V(t1)}, 3, {V(t1)}\nv_add_u32 {V(rad)}, {V(rad)}, {V(t1)}")
        a(f"s_lshl_b32 {S(sT0)}, {S(sWave)}, 7\ns_add_u32 {S(sT0)}, {S(sT0)}, {LN_LDS}")
        a(f"v_add_u32 {V(rad)}, {S(sT0)}, {V(rad)}")
        a(f"s_lshl_b32 {S(sT0)}, {S(sWave)}, 1")
        for i in range(3):
            a(f"v_add_u32 {V(t1)}, {S(sT0)}, {V(hh)}")
            if i: a(f"v_add_u32 {V(t1)}, {8*i}, {V(t1)}")
            a(f"v_mul_u32_u24 {V(t2)}, 43, {V(t1)}\nv_lshrrev_b32 {V(t2)}, 7, {V(t2)}")
            a(f"v_mul_u32_u24 {V(t3)}, 3, {V(t2)}\nv_sub_u32 {V(t3)}, {V(t1)}, {V(t3)}")
            a(f"v_mul_u32_u24 {V(t2)}, 393216, {V(t2)}")
            a(f"v_lshl_add_u32 {V(t2)}, {V(t3)}, 10, {V(t2)}")
            a(f"v_lshl_add_u32 {V(sad+i)}, {V(l31)}, 4, {V(t2)}")
            if i == 2:
                a(f"v_cmp_lt_u32 vcc, 17, {V(t1)}\nv_mov_b32 {V(t2)}, {OOB}\nv_cndmask_b32 {V(sad+i)}, {V(sad+i)}, {V(t2)}, vcc")
        a(f"s_lshr_b32 {S(sT0)}, s2, 1\ns_mul_i32 {S(sT0)}, {S(sT0)}, 3072\ns_and_b32 {S(sT1)}, s2, 1\ns_lshl_b32 {S(sT1)}, {S(sT1)}, 9")
        a(f"s_add_u32 {S(sT0)}, {S(sT0)}, {S(sT1)}\ns_add_u32 {S(sT0)}, {S(sT0)}, {WS_HT}")
        a("s_waitcnt lgkmcnt(0)\ns_barrier")
        for i in range(3):
            a(f"ds_read_b64_tr_b16 {V(tr+4*i,2)}, {V(rad)} offset:{i*512}")
            a(f"ds_read_b64_tr_b16 {V(tr+4*i+2,2)}, {V(rad)} offset:{i*512 + 4*LN_ROW}")
        a("s_waitcnt lgkmcnt(0)")
        for i in range(3):
            a(f"buffer_store_dwordx4 {V(tr+4*i,4)}, {V(sad+i)}, {S(sWS,4)}, {S(sT0)} offen"); vm.issue("lnst")
        va.release(mk)

    a(f"s_cmp_ge_u32 s2, 192\ns_cbranch_scc1 {Lln}")
    a(f"s_and_b32 {S(sT0)}, s2, 3\ns_lshl_b32 {S(sT0)}, {S(sT0)}, 2\ns_bfe_u32 {S(sT1)}, s2, 0x20003\ns_add_u32 {S(sTg)}, {S(sT0)}, {S(sT1)}")
    a(f"s_bfe_u32 {S(sT0)}, s2, 0x10002\ns_mul_i32 {S(sT0)}, {S(sT0)}, 6\ns_lshr_b32 {S(sT1)}, s2, 5\ns_add_u32 {S(sNg)}, {S(sT0)}, {S(sT1)}")
    a(f"s_lshr_b32 {S(sPart)}, {S(sNg)}, 2\ns_and_b32 {S(sHg)}, {S(sNg)}, 3")
    a(f"s_mul_i32 {S(sXoff)}, {S(sTg)}, {128*1152}\ns_mul_i32 {S(sWoff)}, {S(sNg)}, 288")
    a(f"s_lshl_b32 {S(sXm0)}, {S(sWave)}, 12\ns_lshl_b32 {S(sWm0)}, {S(sWave)}, 10\ns_add_u32 {S(sWm0)}, {S(sWm0)}, {W_LDS}")
    xsrc = va.alloc(4); wsrc = va.alloc(5)
    a(f"s_lshl_b32 {S(sT0)}, {S(sWave)}, 5")
    for i in range(4):
        a(f"v_lshrrev_b32 {V(t1)}, 3, {V(lane)}\nv_add_u32 {V(t1)}, {8*i}, {V(t1)}")
        a(f"v_bfe_u32 {V(t2)}, {V(t1)}, 1, 3\nv_and_b32 {V(t3)}, 7, {V(lane)}\nv_xor_b32 {V(t2)}, {V(t2)}, {V(t3)}")
        a(f"v_add_u32 {V(t1)}, {S(sT0)}, {V(t1)}\nv_mul_u32_u24 {V(t1)}, 1152, {V(t1)}")
        a(f"v_lshl_add_u32 {V(xsrc+i)}, {V(t2)}, 4, {V(t1)}")
    a(f"s_lshl_b32 {S(sT0)}, {S(sWave)}, 6")
    for i in range(5):
        a(f"v_add_u32 {V(t1)}, {S(sT0)}, {V(lane)}")
        if i: a(f"v_add_u32 {V(t1)}, {256*i}, {V(t1)}")
        a(f"v_mul_u32_u24 {V(t2)}, 3641, {V(t1)}\nv_lshrrev_b32 {V(t2)}, 16, {V(t2)}")
        a(f"v_mul_u32_u24 {V(t3)}, 18, {V(t2)}\nv_sub_u32 {V(t3)}, {V(t1)}, {V(t3)}")
        a(f"v_mul_u32_u24 {V(t2)}, 3456, {V(t2)}")
        a(f"v_lshl_add_u32 {V(wsrc+i)}, {V(t3)}, 4, {V(t2)}")
        if i == 4:
            a(f"v_cmp_lt_u32 vcc, 1151, {V(t1)}\nv_mov_b32 {V(t2)}, {OOB}\nv_cndmask_b32 {V(wsrc+i)}, {V(wsrc+i)}, {V(t2)}, vcc")
    for idx in range(1280): assert (idx*3641) >> 16 == idx // 18
    vm = VmTrack()
    def dma_stage(st, vm):
        slot = st % 4
        a(f"s_add_u32 {S(sT0)}, {S(sXoff)}, {st*128}")
        a(f"s_add_u32 {S(sT1)}, {S(sWoff)}, {st*64*3456}")
        for i in range(4):
            a(f"s_add_u32 m0, {S(sXm0)}, {X_LDS + slot*16384 + i*1024}")
            a(f"buffer_load_dwordx4 {V(xsrc+i)}, {S(sX,4)}, {S(sT0)} offen lds")
        for i in range(5):
            a(f"s_add_u32 m0, {S(sWm0)}, {slot*20480 + i*4096}")
            a(f"buffer_load_dwordx4 {V(wsrc+i)}, {S(sW,4)}, {S(sT1)} offen lds")
        vm.issue(f"st{st}", 9)
    for st in range(4): dma_stage(st, vm)
    ln_body(vm, 36)
    xrd = va.alloc(4); wm = va.alloc(2); wt = va.alloc(2)
    a(f"v_bfe_u32 {V(t1)}, {V(l31)}, 1, 3")
    a(f"v_lshlrev_b32 {V(t2)}, 7, {V(l31)}\nv_add_u32 {V(t2)}, {S(sXm0)}, {V(t2)}")
    for ks in range(4):
        a(f"v_add_u32 {V(t3)}, {2*ks}, {V(hh)}\nv_xor_b32 {V(t3)}, {V(t3)}, {V(t1)}\nv_lshl_add_u32 {V(xrd+ks)}, {V(t3)}, 4, {V(t2)}")
    a(f"v_bfe_u32 {V(t1)}, {V(lane)}, 2, 2\nv_lshl_add_u32 {V(t1)}, {V(hh)}, 3, {V(t1)}\nv_mul_u32_u24 {V(t1)}, 288, {V(t1)}")
    a(f"v_add_u32 {V(t1)}, {W_LDS}, {V(t1)}")
    a(f"v_bfe_u32 {V(t2)}, {V(lane)}, 4, 1\nv_mul_u32_u24 {V(t2)}, 5, {V(t2)}\nv_and_b32 {V(t3)}, 3, {V(lane)}\nv_add_u32 {V(t2)}, {V(t2)}, {V(t3)}")
    a(f"v_lshl_add_u32 {V(wm)}, {V(t2)}, 3, {V(t1)}\nv_add_u32 {V(wm+1)}, 40960, {V(wm)}")
    a(f"v_mul_u32_u24 {V(t2)}, 72, {V(t3)}\nv_add3_u32 {V(wt)}, {V(t2)}, {V(t1)}, 32\nv_add_u32 {V(wt+1)}, 40960, {V(wt)}")
    acc = va.alloc(80, 4); xf = va.alloc(8, 4); wf = va.alloc(20, 4); pk = va.alloc(8, 4); so = va.alloc(); so2 = va.alloc()
    a(f"s_lshl_b32 {S(sT2)}, {S(sTg)}, 2\ns_add_u32 {S(sT2)}, {S(sT2)}, {S(sWave)}")

    def rd_x(k):
        st, ks = divmod(k, 4)
        a(f"ds_read_b128 {V(xf+4*(k%2),4)}, {V(xrd+ks)} offset:{(st%4)*16384}")
    def rd_w(k, j):
        st, ks = divmod(k, 4); slot = st % 4
        base = (wm if j < 4 else wt) + slot // 2
        off = (slot % 2)*20480 + ks*4608 + (j*72 if j < 4 else 0)
        a(f"ds_read_b64_tr_b16 {V(wf+4*j,2)}, {V(base)} offset:{off}")
        a(f"ds_read_b64_tr_b16 {V(wf+4*j+2,2)}, {V(base)} offset:{off+1152}")
    def mainloop(vm, vpart):
        a(f"s_waitcnt vmcnt({vm.wait('st0')})\ns_barrier")
        rd_x(0)
        for j in range(5): rd_w(0, j)
        for k in range(36):
            st, ks = divmod(k, 4)
            last = k == 35
            if ks == 3 and not last:
                a(f"s_waitcnt vmcnt({vm.wait(f'st{st+1}')}) lgkmcnt(0)\ns_barrier")
                if st + 4 < 9: dma_stage(st + 4, vm)
            for j in range(5):
                if not (ks == 3 and not last):
                    n = (8 if j == 0 else 9) if not last else 2*(4-j)
                    a(f"s_waitcnt lgkmcnt({n})")
                x = xf + 4*(k % 2); w = wf + 4*j
                c = "0" if k == 0 else None
                a(mfma(acc+16*j, x, w, c) if vpart else mfma(acc+16*j, w, x, c))
                if not last:
                    if j == 0: rd_x(k+1)
                    rd_w(k+1, j)
    import copy
    vm2 = copy.deepcopy(vm)
    a(f"s_cmp_eq_u32 {S(sPart)}, 2\ns_cbranch_scc1 {Lv}")
    Lk = a.label("K1K"); Lqk = a.label("K1QK")
    a(f"s_cmp_eq_u32 {S(sPart)}, 1\ns_cbranch_scc1 {Lk}")
    a(f"s_lshl_b32 {S(sMain)}, {S(sHg)}, 19\ns_lshl_b32 {S(sT0)}, {S(sT2)}, 10\ns_add_u32 {S(sMain)}, {S(sMain)}, {S(sT0)}\ns_add_u32 {S(sMain)}, {S(sMain)}, {WS_QF}")
    a(f"s_mov_b32 {S(sHs)}, 65536\ns_mov_b32 {S(sTs)}, 8192")
    a(f"s_lshl_b32 {S(sTail)}, {S(sHg)}, 16\ns_lshl_b32 {S(sT0)}, {S(sT2)}, 7\ns_add_u32 {S(sTail)}, {S(sTail)}, {S(sT0)}\ns_add_u32 {S(sTail)}, {S(sTail)}, {WS_QT}")
    a(f"s_mov_b32 {S(sPart)}, {f32(QSCALE)}\ns_branch {Lqk}")
    a(f"{Lk}:")
    a(f"s_mul_i32 {S(sMain)}, {S(sHg)}, {8*KVH}\ns_lshr_b32 {S(sT0)}, {S(sT2)}, 3\ns_mul_i32 {S(sT0)}, {S(sT0)}, {KVCH}\ns_add_u32 {S(sMain)}, {S(sMain)}, {S(sT0)}")
    a(f"s_add_u32 {S(sMain)}, {S(sMain)}, {WS_KV}\ns_and_b32 {S(sT0)}, {S(sT2)}, 7\ns_lshl_b32 {S(sT1)}, {S(sT0)}, 7")
    a(f"s_add_u32 {S(sTail)}, {S(sMain)}, {S(sT1)}\ns_add_u32 {S(sTail)}, {S(sTail)}, 8192")
    a(f"s_lshl_b32 {S(sT0)}, {S(sT0)}, 10\ns_add_u32 {S(sMain)}, {S(sMain)}, {S(sT0)}")
    a(f"s_mov_b32 {S(sHs)}, {KVH}\ns_mov_b32 {S(sTs)}, {KVH}\ns_mov_b32 {S(sPart)}, 1.0")
    a(f"{Lqk}:")
    mainloop(vm, False)
    a(f"v_lshlrev_b32 {V(so)}, 4, {V(lane)}")
    a(f"v_mul_lo_u32 {V(so2)}, {V(hh)}, {S(sTs)}\nv_lshlrev_b32 {V(so2)}, 1, {V(so2)}\nv_lshl_add_u32 {V(so2)}, {V(l31)}, 2, {V(so2)}")
    for j in range(4):
        for odd in range(2):
            b = acc + 16*j + 8*odd; p = pk + 4*odd
            for i in range(8): a(f"v_mul_f32 {V(b+i)}, {S(sPart)}, {V(b+i)}")
            for i in range(4): a(f"v_cvt_pk_bf16_f32 {V(p+i)}, {V(b+2*i)}, {V(b+2*i+1)}")
            a(f"buffer_store_dwordx4 {V(p,4)}, {V(so)}, {S(sWS,4)}, {S(sMain)} offen")
            a(f"s_add_u32 {S(sMain)}, {S(sMain)}, {S(sHs)}")
    b = acc + 64
    for i in range(8): a(f"v_mul_f32 {V(b+i)}, {S(sPart)}, {V(b+i)}")
    for i in range(4): a(f"v_cvt_pk_bf16_f32 {V(b+8+i)}, {V(b+2*i)}, {V(b+2*i+1)}")
    for i, mult in enumerate((0, 1, 4, 5)):
        a(f"s_mul_i32 {S(sT0)}, {S(sTs)}, {mult}\ns_add_u32 {S(sT0)}, {S(sT0)}, {S(sTail)}")
        a(f"buffer_store_dword {V(b+8+i)}, {V(so2)}, {S(sWS,4)}, {S(sT0)} offen")
    a("s_endpgm")
    a(f"{Lv}:")
    a(f"s_mul_i32 {S(sMain)}, {S(sHg)}, {8*KVH}\ns_lshr_b32 {S(sT0)}, {S(sT2)}, 3\ns_mul_i32 {S(sT0)}, {S(sT0)}, {KVCH}\ns_add_u32 {S(sMain)}, {S(sMain)}, {S(sT0)}")
    a(f"s_and_b32 {S(sT0)}, {S(sT2)}, 7\ns_mul_i32 {S(sT0)}, {S(sT0)}, 1280\ns_add_u32 {S(sMain)}, {S(sMain)}, {S(sT0)}\ns_add_u32 {S(sMain)}, {S(sMain)}, {WS_KV + 9216}")
    a(f"s_mov_b32 {S(sTail)}, {S(sMain)}\ns_mov_b32 {S(sHs)}, {KVH}")
    mainloop(vm2, True)
    a(f"v_bfe_u32 {V(t1)}, {V(lane)}, 4, 1\nv_mul_u32_u24 {V(so)}, {KVH+32}, {V(t1)}\nv_mul_u32_u24 {V(t2)}, 320, {V(hh)}\nv_add_u32 {V(so)}, {V(so)}, {V(t2)}")
    a(f"v_and_b32 {V(t3)}, 15, {V(lane)}\nv_lshl_add_u32 {V(so)}, {V(t3)}, 4, {V(so)}")
    a(f"v_lshrrev_b32 {V(t3)}, 1, {V(t3)}\nv_mul_u32_u24 {V(so2)}, {KVH}, {V(t3)}\nv_add_u32 {V(so2)}, {V(so2)}, {V(t2)}")
    a(f"v_and_b32 {V(t2)}, 2, {V(lane)}\nv_xor_b32 {V(t2)}, 2, {V(t2)}\nv_lshlrev_b32 {V(t2)}, 3, {V(t2)}")
    a(f"v_cmp_eq_u32 vcc, 1, {V(t1)}\nv_cndmask_b32 {V(t2)}, {V(t2)}, 18, vcc")
    a(f"v_and_b32 {V(t3)}, 1, {V(lane)}\nv_add_u32 {V(t2)}, {V(t2)}, {V(t3)}\nv_lshl_add_u32 {V(so2)}, {V(t2)}, 4, {V(so2)}")
    for j in range(4):
        for grp in range(2):
            b = acc + 16*j + 8*grp; p = pk + 4*grp
            for i in range(4): a(f"v_cvt_pk_bf16_f32 {V(p+i)}, {V(b+2*i)}, {V(b+2*i+1)}")
            a(f"buffer_store_dwordx4 {V(p,4)}, {V(so)}, {S(sWS,4)}, {S(sMain)} offen offset:{grp*640}")
        a(f"s_add_u32 {S(sMain)}, {S(sMain)}, {2*KVH}")
    a(f"v_mov_b32 {V(t2)}, 0x3f803f80")
    for grp in range(2):
        b = acc + 64 + 8*grp; p = pk + 4*grp
        for i in range(4):
            a(f"v_cvt_pk_bf16_f32 {V(p+i)}, {V(b+2*i)}, {V(b+2*i+1)}")
            a(f"v_cndmask_b32 {V(p+i)}, {V(p+i)}, {V(t2)}, vcc")
        a(f"buffer_store_dwordx4 {V(p,4)}, {V(so2)}, {S(sWS,4)}, {S(sTail)} offen offset:{grp*640}")
    a("s_endpgm")
    a(f"{Lln}:")
    ln_body(VmTrack(), 0)
    a(f"{Lend}:\ns_endpgm")
    return dict(name=name, grid=256, block=256, lds=K1_LDS, desc=kernel_desc(name, va.hi, 0, 40))
```

```python
from common import *

def gelu_inplace(a, regs, tmp):
    c0 = -2.0 * math.sqrt(2.0 / math.pi) * math.log2(math.e)
    c1 = c0 * 0.044715
    n = len(regs)
    for i, r in enumerate(regs): a(f"v_mul_f32 {V(tmp+i)}, {V(r)}, {V(r)}")
    for i, r in enumerate(regs): a(f"v_fma_f32 {V(tmp+i)}, {V(tmp+i)}, s60, v1")
    for i, r in enumerate(regs): a(f"v_mul_f32 {V(tmp+i)}, {V(tmp+i)}, {V(r)}")
    for i, r in enumerate(regs): a(f"v_exp_f32 {V(tmp+i)}, {V(tmp+i)}")
    for i, r in enumerate(regs): a(f"v_add_f32 {V(tmp+i)}, 1.0, {V(tmp+i)}")
    for i, r in enumerate(regs): a(f"v_rcp_f32 {V(tmp+i)}, {V(tmp+i)}")
    for i, r in enumerate(regs): a(f"v_mul_f32 {V(r)}, {V(r)}, {V(tmp+i)}")
    return c0, c1

def pgemm_loop(a, va, P):
    nX, nW, NS, N = P["nX"], P["nW"], P["NS"], P["N"]
    xb_ = va.alloc(4*nX*N, 4); wf = va.alloc(4*nW*2, 4)
    vm = P["vm"]
    slotb = nW * 1024
    def issue_x(k):
        for b in range(nX):
            a(f"buffer_load_dwordx4 {V(xb_ + 4*(nX*(k % N) + b), 4)}, {V(P['vXoff'])}, {S(P['sXsrd'],4)}, {S(P['sXoff'])} offen offset:{b*1024}")
        a(f"s_add_u32 {S(P['sXoff'])}, {S(P['sXoff'])}, {nX*1024}")
        vm.issue(f"X{k}", nX)
    def issue_w1(k, i):
        a(f"s_add_u32 m0, {S(P['sM0'])}, {(k % N)*slotb + i*1024}")
        a(f"buffer_load_dwordx4 {V(P['vWsrc'])}, {S(P['sWsrd'],4)}, {S(P['sWoff'])} offen lds")
        a(f"s_add_u32 {S(P['sWoff'])}, {S(P['sWoff'])}, {P['wrow']}")
        vm.issue(f"W{k}")
    def issue_w(k):
        for i in range(nW): issue_w1(k, i)
    def rd_w(k, b):
        d = wf + 4*(nW*(k % 2) + b); off = (k % N)*slotb
        a(f"ds_read_b64_tr_b16 {V(d,2)}, {V(P['vWrd']+b)} offset:{off}")
        a(f"ds_read_b64_tr_b16 {V(d+2,2)}, {V(P['vWrd']+b)} offset:{off + P['rd2']}")
    issue_w(0)
    for k in range(N-1):
        issue_x(k); issue_w(k+1)
    if P.get("mid"): P["mid"]()
    a(f"s_waitcnt vmcnt({vm.wait('X0')})")
    for b in range(nW): rd_w(0, b)
    def step(k, first=False):
        order = [(xb, wb) for wb in range(nW) for xb in range(nX)]
        fill = []
        if k + N - 1 < NS: fill.append(lambda: issue_x(k + N - 1))
        if k + N < NS:
            for i in range(nW): fill.append(lambda i=i: issue_w1(k + N, i))
        if k + 1 < NS:
            fill.append(lambda: a(f"s_waitcnt vmcnt({vm.wait(f'X{k+1}')})"))
            for b in range(nW): fill.append(lambda b=b: rd_w(k + 1, b))
        a("s_waitcnt lgkmcnt(0)")
        nm = len(order)
        gaps = max(1, nm - P.get("tailgap", 2))
        per = [[] for _ in range(nm)]
        for i, f in enumerate(fill): per[i * gaps // len(fill)].append(f)
        for m, (xb, wb) in enumerate(order):
            kind, base = P["acc"](xb, wb)
            x = xb_ + 4*(nX*(k % N) + xb); w = wf + 4*(nW*(k % 2) + wb)
            a(mfma(base, x, w, None, kind) if P["x_first"] else mfma(base, w, x, None, kind))
            for f in per[m]: f()
    assert NS % N == 0 and N % 2 == 0
    nit = NS // N - 1
    L = a.label("PG")
    a(f"s_mov_b32 {S(P['sCnt'])}, {nit}")
    a(f".p2align 4\n{L}:")
    q0 = list(vm.q)
    for k in range(N): step(k)
    sh = [t[0] + str(int(t[1:]) - N) if t[0] in "XW" and t[1:].isdigit() else t for t in vm.q]
    assert sh == q0, (sh, q0)
    a(f"s_sub_u32 {S(P['sCnt'])}, {S(P['sCnt'])}, 1\ns_cmp_lg_u32 {S(P['sCnt'])}, 0\ns_cbranch_scc1 {L}")
    base = NS - N
    vm.q = [t[0] + str(int(t[1:]) + base) for t in q0]
    for k in range(base, NS): step(k)

def common_setup(a, va, sWave):
    lane = va.alloc(); hh = va.alloc(); l31 = va.alloc(); t = va.alloc(4)
    a(f"v_and_b32 {V(lane)}, 63, v0\nv_lshrrev_b32 {V(t)}, 6, v0\nv_readfirstlane_b32 {S(sWave)}, {V(t)}")
    a(f"v_lshrrev_b32 {V(hh)}, 5, {V(lane)}\nv_and_b32 {V(l31)}, 31, {V(lane)}")
    return lane, hh, l31, t

G1_REG = 36864
G1_LDS = 4 * G1_REG
def gen_gemm1(a, name="gemm1_kernel"):
    va = RegAlloc("v", 2, 256)
    kernel_begin(a, name)
    Lend = a.label("G1END")
    sW, sB, sWS = 4, 8, 16
    sWave, sFt, sDt, sXoff, sWoff, sM0, sCnt, sT0, sT1, sT2 = range(20, 30)
    a(f"s_cmp_ge_u32 s2, 216\ns_cbranch_scc1 {Lend}")
    for r, n in ((sW, "w1"), (sB, "b1"), (sWS, "ws")): load_srd(a, r, n, 0)
    lane, hh, l31, t = common_setup(a, va, sWave)
    a(f"s_and_b32 {S(sT0)}, s2, 7\ns_mul_i32 {S(sT0)}, {S(sT0)}, 27\ns_lshr_b32 {S(sT1)}, s2, 3\ns_add_u32 {S(sT0)}, {S(sT0)}, {S(sT1)}")
    a(f"s_mul_i32 {S(sFt)}, {S(sT0)}, 171\ns_lshr_b32 {S(sFt)}, {S(sFt)}, 10\ns_mul_i32 {S(sT1)}, {S(sFt)}, 6\ns_sub_u32 {S(sDt)}, {S(sT0)}, {S(sT1)}")
    for x in range(216): assert (x*171) >> 10 == x // 6
    a(f"s_lshl_b32 {S(sT0)}, {S(sDt)}, 2\ns_add_u32 {S(sT0)}, {S(sT0)}, {S(sWave)}\ns_mul_i32 {S(sXoff)}, {S(sT0)}, {32*3072}")
    if WS_HT: a(f"s_add_u32 {S(sXoff)}, {S(sXoff)}, {WS_HT}")
    a(f"s_mul_i32 {S(sWoff)}, {S(sWave)}, {512*9216}\ns_lshl_b32 {S(sT0)}, {S(sFt)}, 8\ns_add_u32 {S(sWoff)}, {S(sWoff)}, {S(sT0)}")
    a(f"s_mul_i32 {S(sM0)}, {S(sWave)}, {G1_REG}")
    vX = va.alloc(); vWs = va.alloc(); vWr = va.alloc(4); bias = va.alloc(8, 2)
    a(f"v_lshlrev_b32 {V(vX)}, 4, {V(lane)}")
    a(f"v_lshrrev_b32 {V(t)}, 4, {V(lane)}\nv_lshlrev_b32 {V(t+1)}, 2, {V(t)}\nv_and_b32 {V(t+2)}, 15, {V(lane)}\nv_xor_b32 {V(t+1)}, {V(t+1)}, {V(t+2)}")
    a(f"v_mul_u32_u24 {V(t)}, 9216, {V(t)}\nv_lshl_add_u32 {V(vWs)}, {V(t+1)}, 4, {V(t)}")
    a(f"v_bfe_u32 {V(t)}, {V(lane)}, 2, 2\nv_lshl_add_u32 {V(t+1)}, {V(hh)}, 3, {V(t)}\nv_lshlrev_b32 {V(t+1)}, 8, {V(t+1)}")
    a(f"v_bfe_u32 {V(t+2)}, {V(lane)}, 4, 1\nv_lshl_add_u32 {V(t+1)}, {V(t+2)}, 5, {V(t+1)}")
    a(f"v_and_b32 {V(t+2)}, 3, {V(lane)}\nv_lshl_add_u32 {V(t+1)}, {V(t+2)}, 3, {V(t+1)}\nv_add_u32 {V(t+1)}, {S(sM0)}, {V(t+1)}")
    a(f"v_xor_b32 {V(t)}, {S(sWave)}, {V(t)}")
    for b in range(4): a(f"v_xor_b32 {V(t+2)}, {b}, {V(t)}\nv_lshl_add_u32 {V(vWr+b)}, {V(t+2)}, 6, {V(t+1)}")
    a("s_waitcnt lgkmcnt(0)")
    for r, n in ((sW, "w1"), (sB, "b1"), (sWS, "ws")): fin_srd(a, r, n)
    vm = VmTrack()
    a(f"s_lshl_b32 {S(sT0)}, {S(sFt)}, 8\ns_lshl_b32 {S(sT1)}, {S(sWave)}, 6\ns_add_u32 {S(sT0)}, {S(sT0)}, {S(sT1)}\nv_lshlrev_b32 {V(t)}, 3, {V(hh)}")
    for g in range(4): a(f"buffer_load_dwordx2 {V(bias+2*g,2)}, {V(t)}, {S(sB,4)}, {S(sT0)} offen offset:{16*g}")
    keep = va.alloc(48, 4)
    def acc(xb, wb): return ("v", keep + 16*xb) if wb == 0 else ("a", 48*(wb-1) + 16*xb)
    def mid():
        for i in range(48): a(f"v_mov_b32 {V(keep+i)}, 0")
        for i in range(144): a(f"v_accvgpr_write_b32 {A(i)}, 0")
    mk = va.mark()
    pgemm_loop(a, va, dict(nX=3, nW=4, NS=32, N=8, acc=acc, x_first=False, sXsrd=sWS, sWsrd=sW, sXoff=sXoff, sWoff=sWoff, sM0=sM0,
        vXoff=vX, vWsrc=vWs, vWrd=vWr, wrow=4*9216, rd2=1024, sCnt=sCnt, vm=vm, mid=mid, tailgap=3))
    va.release(mk)
    wa = va.alloc(); ra = va.alloc(3); rb = va.alloc(48, 4); tmp = va.alloc(16); bf = va.alloc(16); pk = va.alloc(8, 4)
    a(f"v_add_u32 {V(wa)}, {S(sM0)}, {V(vX)}")
    for s in range(1, 4):
        a(f"s_xor_b32 {S(sT0)}, {S(sWave)}, {s}\ns_mul_i32 {S(sT0)}, {S(sT0)}, {G1_REG}\ns_add_u32 {S(sT0)}, {S(sT0)}, {(s-1)*12288}")
        a(f"v_add_u32 {V(ra+s-1)}, {S(sT0)}, {V(vX)}")
    for i in range(36): a(f"ds_write_b128 {V(wa)}, {A(4*i,4)} offset:{i*1024}")
    c0 = -2.0 * math.sqrt(2.0 / math.pi) * math.log2(math.e)
    a(f"s_mov_b32 s60, {f32(c0*0.044715)}\nv_mov_b32 v1, {f32(c0)}")
    for g in range(4):
        for i in range(2):
            a(f"v_lshlrev_b32 {V(bf+4*g+2*i)}, 16, {V(bias+2*g+i)}\nv_and_b32 {V(bf+4*g+2*i+1)}, 0xffff0000, {V(bias+2*g+i)}")
    for xb in range(3):
        for i in range(16): a(f"v_add_f32 {V(keep+16*xb+i)}, {V(keep+16*xb+i)}, {V(bf+i)}")
    a(f"s_mul_i32 {S(sT0)}, {S(sDt)}, 288\ns_lshl_b32 {S(sT1)}, {S(sFt)}, 3\ns_add_u32 {S(sT0)}, {S(sT0)}, {S(sT1)}\ns_lshl_b32 {S(sT1)}, {S(sWave)}, 1")
    a(f"s_add_u32 {S(sT0)}, {S(sT0)}, {S(sT1)}\ns_mul_i32 {S(sT0)}, {S(sT0)}, 3072\ns_add_u32 {S(sT0)}, {S(sT0)}, {WS_U}\ns_add_u32 {S(sT1)}, {S(sT0)}, 3072")
    a("s_waitcnt lgkmcnt(0)\ns_barrier")
    def rd(xb):
        for s in range(3):
            for q in range(4): a(f"ds_read_b128 {V(rb+16*s+4*q,4)}, {V(ra+s)} offset:{(4*xb+q)*1024}")
    rd(0)
    for xb in range(3):
        for s in range(3):
            a(f"s_waitcnt lgkmcnt({8-4*s})")
            for i in range(16): a(f"v_add_f32 {V(keep+16*xb+i)}, {V(keep+16*xb+i)}, {V(rb+16*s+i)}")
        if xb < 2: rd(xb+1)
        gelu_inplace(a, [keep+16*xb+i for i in range(16)], tmp)
        for hf in range(2):
            for i in range(4): a(f"v_cvt_pk_bf16_f32 {V(pk+4*hf+i)}, {V(keep+16*xb+8*hf+2*i)}, {V(keep+16*xb+8*hf+2*i+1)}")
            a(f"buffer_store_dwordx4 {V(pk+4*hf,4)}, {V(vX)}, {S(sWS,4)}, {S(sT1 if hf else sT0)} offen offset:{xb*1024}")
    a(f"{Lend}:\ns_endpgm")
    return dict(name=name, grid=216, block=256, lds=G1_LDS, desc=kernel_desc(name, va.hi, 144, 64))

G2_REG = 18432
G2_LDS = 4 * G2_REG
def reduce4_96x64(a, va, accv, sWave, sM0, vL16, sT0, reg_bytes, mid=None):
    wa = va.alloc(); ra = va.alloc(3); rb = va.alloc(72, 4)
    a(f"v_add_u32 {V(wa)}, {S(sM0)}, {V(vL16)}")
    for s in range(1, 4):
        a(f"s_xor_b32 {S(sT0)}, {S(sWave)}, {s}\ns_mul_i32 {S(sT0)}, {S(sT0)}, {reg_bytes}\ns_add_u32 {S(sT0)}, {S(sT0)}, {(s-1)*6144}")
        a(f"v_add_u32 {V(ra+s-1)}, {S(sT0)}, {V(vL16)}")
    for s in range(1, 4):
        b2, hf = s & 1, s >> 1
        for b3 in range(3):
            for q in range(2):
                a(f"ds_write_b128 {V(wa)}, {V(accv(b3,b2) + 8*hf + 4*q, 4)} offset:{(s-1)*6144 + (2*b3+q)*1024}")
    if mid: mid()
    a("s_waitcnt lgkmcnt(0)\ns_barrier")
    for s in range(3):
        if s == 2: a("s_waitcnt lgkmcnt(6)")
        for i in range(6): a(f"ds_read_b128 {V(rb+24*s+4*i,4)}, {V(ra+s)} offset:{i*1024}")
    for s in range(3):
        a(f"s_waitcnt lgkmcnt({12-6*s})")
        for b3 in range(3):
            for i in range(8): a(f"v_add_f32 {V(accv(b3,0)+i)}, {V(accv(b3,0)+i)}, {V(rb+24*s+8*b3+i)}")

def body_gemm2(a, va, sid, ldsbase=0):
    sW, sB, sWS = 4, 8, 16
    sWave, sSt, sDt, sXoff, sWoff, sM0, sCnt, sT0, sT1, sT2 = range(20, 30)
    for r, n in ((sW, "w2"), (sB, "b2"), (sWS, "ws")): load_srd(a, r, n, 0)
    lane, hh, l31, t = common_setup(a, va, sWave)
    a(f"s_lshr_b32 {S(sT0)}, {S(sid)}, 3\ns_mul_i32 {S(sT1)}, {S(sT0)}, 43\ns_lshr_b32 {S(sT1)}, {S(sT1)}, 8")
    for x in range(24): assert (x*43) >> 8 == x // 6
    a(f"s_mul_i32 {S(sT2)}, {S(sT1)}, 6\ns_sub_u32 {S(sDt)}, {S(sT0)}, {S(sT2)}")
    a(f"s_and_b32 {S(sSt)}, {S(sid)}, 7\ns_lshl_b32 {S(sSt)}, {S(sSt)}, 2\ns_add_u32 {S(sSt)}, {S(sSt)}, {S(sT1)}")
    a(f"s_lshl_b32 {S(sT0)}, {S(sDt)}, 2\ns_add_u32 {S(sT0)}, {S(sT0)}, {S(sWave)}\ns_mul_i32 {S(sXoff)}, {S(sT0)}, {72*3072}\ns_add_u32 {S(sXoff)}, {S(sXoff)}, {WS_U}")
    a(f"s_mul_i32 {S(sWoff)}, {S(sWave)}, {1152*4096}\ns_lshl_b32 {S(sT0)}, {S(sSt)}, 7\ns_add_u32 {S(sWoff)}, {S(sWoff)}, {S(sT0)}")
    a(f"s_mul_i32 {S(sM0)}, {S(sWave)}, {G2_REG}")
    vL = va.alloc(); vX = va.alloc(); vWs = va.alloc(); vWr = va.alloc(2); b2r = va.alloc(); gg = va.alloc(2, 2)
    a(f"v_lshlrev_b32 {V(vL)}, 4, {V(lane)}")
    a(f"s_lshr_b32 {S(sT0)}, {S(sWave)}, 1\ns_lshl_b32 {S(sT0)}, {S(sT0)}, 8\nv_xor_b32 {V(vX)}, {S(sT0)}, {V(vL)}")
    a(f"v_lshrrev_b32 {V(t)}, 3, {V(lane)}\nv_bfe_u32 {V(t+1)}, {V(lane)}, 4, 1\nv_lshlrev_b32 {V(t+1)}, 2, {V(t+1)}\nv_and_b32 {V(t+2)}, 7, {V(lane)}\nv_xor_b32 {V(t+1)}, {V(t+1)}, {V(t+2)}")
    a(f"v_lshlrev_b32 {V(t)}, 12, {V(t)}\nv_lshl_add_u32 {V(vWs)}, {V(t+1)}, 4, {V(t)}")
    a(f"v_bfe_u32 {V(t)}, {V(lane)}, 2, 2\nv_lshl_add_u32 {V(t+1)}, {V(hh)}, 2, {V(t)}\nv_lshlrev_b32 {V(t+1)}, 7, {V(t+1)}")
    a(f"v_bfe_u32 {V(t+2)}, {V(lane)}, 4, 1\nv_lshl_add_u32 {V(t+1)}, {V(t+2)}, 5, {V(t+1)}")
    a(f"v_and_b32 {V(t+2)}, 3, {V(lane)}\nv_lshl_add_u32 {V(t+1)}, {V(t+2)}, 3, {V(t+1)}\nv_add_u32 {V(t+1)}, {S(sM0)}, {V(t+1)}")
    a(f"s_and_b32 {S(sT0)}, {S(sWave)}, 1\nv_lshrrev_b32 {V(t)}, 1, {V(t)}\nv_xor_b32 {V(t)}, {S(sT0)}, {V(t)}")
    for b in range(2): a(f"v_xor_b32 {V(t+2)}, {b}, {V(t)}\nv_lshl_add_u32 {V(vWr+b)}, {V(t+2)}, 6, {V(t+1)}")
    a("s_waitcnt lgkmcnt(0)")
    for r, n in ((sW, "w2"), (sB, "b2"), (sWS, "ws")): fin_srd(a, r, n)
    vm = VmTrack()
    a(f"s_lshl_b32 {S(sT1)}, {S(sSt)}, 6\ns_lshl_b32 {S(sT0)}, {S(sT0)}, 5\ns_add_u32 {S(sT0)}, {S(sT0)}, {S(sT1)}\nv_add_u32 {V(t)}, {S(sT0)}, {V(l31)}")
    a(f"v_lshlrev_b32 {V(t+1)}, 1, {V(t)}\nv_lshlrev_b32 {V(t+2)}, 3, {V(t)}\ns_mov_b32 {S(sT0)}, {WS_G}")
    a(f"buffer_load_ushort {V(b2r)}, {V(t+1)}, {S(sB,4)}, 0 offen")
    a(f"buffer_load_dwordx2 {V(gg,2)}, {V(t+2)}, {S(sWS,4)}, {S(sT0)} offen")
    accb = va.alloc(96, 4)
    def accv(xb, wb): return accb + 16*(3*wb + xb)
    def mid():
        for i in range(96): a(f"v_mov_b32 {V(accb+i)}, 0")
    mk = va.mark()
    pgemm_loop(a, va, dict(nX=3, nW=2, NS=72, N=8, acc=lambda xb, wb: ("v", accv(xb, wb)), x_first=True, sXsrd=sWS, sWsrd=sW, sXoff=sXoff,
        sWoff=sWoff, sM0=sM0, vXoff=vX, vWsrc=vWs, vWrd=vWr, wrow=8*4096, rd2=1024, sCnt=sCnt, vm=vm, mid=mid, tailgap=2))
    va.release(mk)
    reduce4_96x64(a, va, accv, sWave, sM0, vL, sT0, G2_REG)
    pk = va.alloc(4, 4)
    a(f"s_mul_i32 {S(sT0)}, {S(sSt)}, 6\ns_add_u32 {S(sT0)}, {S(sT0)}, {S(sDt)}\ns_lshl_b32 {S(sT0)}, {S(sT0)}, 2\ns_add_u32 {S(sT0)}, {S(sT0)}, {S(sWave)}")
    a(f"s_mul_i32 {S(sT0)}, {S(sT0)}, 3072\ns_add_u32 {S(sT0)}, {S(sT0)}, {WS_T}")
    a(f"v_lshlrev_b32 {V(b2r)}, 16, {V(b2r)}")
    for xb in range(3):
        b = accv(xb, 0)
        for i in range(4):
            r0, r1 = b+2*i, b+2*i+1
            a(f"v_cvt_pk_bf16_f32 {V(t)}, {V(r0)}, {V(r1)}")
            a(f"v_lshlrev_b32 {V(r0)}, 16, {V(t)}\nv_and_b32 {V(r1)}, 0xffff0000, {V(t)}")
            a(f"v_add_f32 {V(r0)}, {V(r0)}, {V(b2r)}\nv_add_f32 {V(r1)}, {V(r1)}, {V(b2r)}")
            a(f"v_cvt_pk_bf16_f32 {V(t)}, {V(r0)}, {V(r1)}")
            a(f"v_lshlrev_b32 {V(r0)}, 16, {V(t)}\nv_and_b32 {V(r1)}, 0xffff0000, {V(t)}")
            a(f"v_mul_f32 {V(r0)}, {V(r0)}, {V(gg+1)}\nv_mul_f32 {V(r1)}, {V(r1)}, {V(gg+1)}")
            a(f"v_cvt_pk_bf16_f32 {V(b+8+i)}, {V(r0)}, {V(r1)}")
        a(f"buffer_store_dwordx4 {V(b+8,4)}, {V(vL)}, {S(sWS,4)}, {S(sT0)} offen offset:{xb*1024}")
    a("s_endpgm")

def gen_gemm2(a, name="gemm2_kernel"):
    va = RegAlloc("v", 1, 256)
    kernel_begin(a, name)
    Lend = a.label("G2END")
    a(f"s_cmp_ge_u32 s2, 192\ns_cbranch_scc1 {Lend}")
    body_gemm2(a, va, 2)
    a(f"{Lend}:\ns_endpgm")
    return dict(name=name, grid=192, block=256, lds=G2_LDS, desc=kernel_desc(name, va.hi, 0, 64))

OUT_REG = 27648
OUT_LDS = 4 * OUT_REG
def gen_out(a, name="outp_kernel"):
    va = RegAlloc("v", 1, 256)
    kernel_begin(a, name)
    Lend = a.label("OEND")
    sW, sO, sWS = 4, 8, 16
    sWave, sSt, sDt, sXoff, sWoff, sM0, sCnt, sT0, sT1, sT2, sX1 = range(20, 31)
    sid = 2
    a(f"s_cmp_ge_u32 s2, 192\ns_cbranch_scc1 {Lend}")
    for r, n in ((sW, "wo"), (sO, "out"), (sWS, "ws")): load_srd(a, r, n, 0)
    lane, hh, l31, t = common_setup(a, va, sWave)
    a(f"s_lshr_b32 {S(sT0)}, {S(sid)}, 3\ns_mul_i32 {S(sT1)}, {S(sT0)}, 43\ns_lshr_b32 {S(sT1)}, {S(sT1)}, 8")
    a(f"s_mul_i32 {S(sT2)}, {S(sT1)}, 6\ns_sub_u32 {S(sDt)}, {S(sT0)}, {S(sT2)}")
    a(f"s_and_b32 {S(sSt)}, {S(sid)}, 7\ns_lshl_b32 {S(sSt)}, {S(sSt)}, 2\ns_add_u32 {S(sSt)}, {S(sSt)}, {S(sT1)}")
    a(f"s_and_b32 {S(sT2)}, {S(sWave)}, 1\ns_lshl_b32 {S(sT0)}, {S(sSt)}, 1\ns_add_u32 {S(sT0)}, {S(sT0)}, {S(sT2)}")
    a(f"s_mul_i32 {S(sT1)}, {S(sWave)}, {9*1024}\ns_add_u32 {S(sT1)}, {S(sT1)}, {WS_OF}")
    a(f"s_mul_i32 {S(sXoff)}, {S(sT0)}, {36*1024}\ns_add_u32 {S(sXoff)}, {S(sXoff)}, {S(sT1)}")
    a(f"s_xor_b32 {S(sT0)}, {S(sT0)}, 1\ns_mul_i32 {S(sX1)}, {S(sT0)}, {36*1024}\ns_add_u32 {S(sX1)}, {S(sX1)}, {S(sT1)}")
    a(f"s_mul_i32 {S(sWoff)}, {S(sWave)}, {144*1152}\ns_mul_i32 {S(sT0)}, {S(sDt)}, 192\ns_add_u32 {S(sWoff)}, {S(sWoff)}, {S(sT0)}")
    a(f"s_mul_i32 {S(sM0)}, {S(sWave)}, {OUT_REG}")
    vL = va.alloc(); vWs = va.alloc(3); vWm = va.alloc(); vWt = va.alloc(); gg = va.alloc(2, 2); tin = va.alloc(12, 4); vO = va.alloc()
    a(f"v_lshlrev_b32 {V(vL)}, 4, {V(lane)}")
    for i in range(3):
        a(f"v_add_u32 {V(t)}, {64*i}, {V(lane)}\nv_mul_u32_u24 {V(t+1)}, 171, {V(t)}\nv_lshrrev_b32 {V(t+1)}, 11, {V(t+1)}")
        a(f"v_mul_u32_u24 {V(t+2)}, 12, {V(t+1)}\nv_sub_u32 {V(t+2)}, {V(t)}, {V(t+2)}\nv_mul_u32_u24 {V(t+1)}, 1152, {V(t+1)}")
        a(f"v_lshl_add_u32 {V(vWs+i)}, {V(t+2)}, 4, {V(t+1)}")
    for x in range(192): assert (x*171) >> 11 == x // 12
    a(f"s_lshr_b32 {S(sT0)}, {S(sWave)}, 1\nv_bfe_u32 {V(t+2)}, {V(lane)}, 4, 1\nv_xor_b32 {V(t+2)}, {S(sT0)}, {V(t+2)}\nv_lshlrev_b32 {V(t+1)}, 5, {V(t+2)}")
    a(f"v_and_b32 {V(t+2)}, 3, {V(lane)}\nv_lshl_add_u32 {V(t+1)}, {V(t+2)}, 3, {V(t+1)}\nv_add_u32 {V(t+1)}, {S(sM0)}, {V(t+1)}")
    a(f"v_bfe_u32 {V(t)}, {V(lane)}, 2, 2")
    a(f"v_lshl_add_u32 {V(t+2)}, {V(hh)}, 2, {V(t)}\nv_mul_u32_u24 {V(t+2)}, 192, {V(t+2)}\nv_add_u32 {V(vWm)}, {V(t+2)}, {V(t+1)}")
    a(f"v_lshrrev_b32 {V(t+2)}, 1, {V(t)}\nv_lshl_add_u32 {V(t+2)}, {V(hh)}, 2, {V(t+2)}\nv_mul_u32_u24 {V(t+2)}, 18, {V(t+2)}")
    a(f"v_and_b32 {V(t)}, 1, {V(t)}\nv_add3_u32 {V(t+2)}, {V(t+2)}, {V(t)}, 16\nv_mul_u32_u24 {V(t+2)}, 192, {V(t+2)}\nv_add_u32 {V(vWt)}, {V(t+2)}, {V(t+1)}")
    a("s_waitcnt lgkmcnt(0)")
    for r, n in ((sW, "wo"), (sO, "out"), (sWS, "ws")): fin_srd(a, r, n)
    vm = VmTrack()
    accb = va.alloc(96, 4)
    mk = va.mark()
    xr = va.alloc(72, 4); wf = va.alloc(24, 4)
    def accv(b3, b2): return accb + 16*(3*b2 + b3)
    for g in range(9):
        for i in range(3):
            a(f"s_add_u32 m0, {S(sM0)}, {(3*g+i)*1024}")
            a(f"buffer_load_dwordx4 {V(vWs+i)}, {S(sW,4)}, {S(sWoff)} offen lds"); vm.issue(f"W{g}")
        a(f"s_add_u32 {S(sWoff)}, {S(sWoff)}, {16*1152}")
        a(f"buffer_load_dwordx4 {V(xr+8*g,4)}, {V(vL)}, {S(sWS,4)}, {S(sXoff)} offen")
        a(f"buffer_load_dwordx4 {V(xr+8*g+4,4)}, {V(vL)}, {S(sWS,4)}, {S(sX1)} offen"); vm.issue(f"X{g}", 2)
        a(f"s_add_u32 {S(sXoff)}, {S(sXoff)}, 1024\ns_add_u32 {S(sX1)}, {S(sX1)}, 1024")
    a(f"s_mul_i32 {S(sT0)}, {S(sSt)}, 6\ns_add_u32 {S(sT0)}, {S(sT0)}, {S(sDt)}\ns_lshl_b32 {S(sT0)}, {S(sT0)}, 2\ns_add_u32 {S(sT0)}, {S(sT0)}, {S(sWave)}")
    a(f"s_mul_i32 {S(sT0)}, {S(sT0)}, 3072\ns_add_u32 {S(sT0)}, {S(sT0)}, {WS_T}")
    for b3 in range(3): a(f"buffer_load_dwordx4 {V(tin+4*b3,4)}, {V(vL)}, {S(sWS,4)}, {S(sT0)} offen offset:{b3*1024}"); vm.issue("T")
    a(f"s_lshl_b32 {S(sT1)}, {S(sSt)}, 6\ns_lshl_b32 {S(sT0)}, {S(sT2)}, 5\ns_add_u32 {S(sT0)}, {S(sT0)}, {S(sT1)}\nv_add_u32 {V(t)}, {S(sT0)}, {V(l31)}")
    a(f"v_lshlrev_b32 {V(t+2)}, 3, {V(t)}\ns_mov_b32 {S(sT0)}, {WS_G}")
    a(f"buffer_load_dwordx2 {V(gg,2)}, {V(t+2)}, {S(sWS,4)}, {S(sT0)} offen"); vm.issue("T")
    a(f"v_mul_u32_u24 {V(vO)}, 1152, {V(t)}\nv_lshl_add_u32 {V(vO)}, {V(hh)}, 4, {V(vO)}")
    def rd(k):
        for b3 in range(3):
            d = wf + 12*(k % 2) + 4*b3
            if k < 8:
                off = 18*k*192 + b3*64
                a(f"ds_read_b64_tr_b16 {V(d,2)}, {V(vWm)} offset:{off}\nds_read_b64_tr_b16 {V(d+2,2)}, {V(vWm)} offset:{off + 8*192}")
            else:
                a(f"ds_read_b64_tr_b16 {V(d,2)}, {V(vWt)} offset:{b3*64}\nds_read_b64_tr_b16 {V(d+2,2)}, {V(vWt)} offset:{b3*64 + 36*192}")
    def need_g(k): return min(8, (18*k + 15) // 16) if k < 8 else 8
    done = -1
    def waitg(g):
        nonlocal done
        if g > done:
            a(f"s_waitcnt vmcnt({vm.wait(f'X{g}')})"); done = g
    waitg(need_g(0)); rd(0)
    for k in range(9):
        if k < 8:
            waitg(max(need_g(k+1), k+1)); rd(k+1)
            a("s_waitcnt lgkmcnt(6)")
        else:
            a("s_waitcnt lgkmcnt(0)")
        for b2 in range(2):
            for b3 in range(3):
                a(mfma(accv(b3, b2), wf + 12*(k % 2) + 4*b3, xr + 8*k + 4*b2, "0" if k == 0 else None))
    va.release(mk)
    reduce4_96x64(a, va, accv, sWave, sM0, vL, sT0, OUT_REG)
    a(f"s_mul_i32 {S(sT0)}, {S(sDt)}, 192\ns_lshr_b32 {S(sT1)}, {S(sWave)}, 1\ns_lshl_b32 {S(sT1)}, {S(sT1)}, 5\ns_add_u32 {S(sT0)}, {S(sT0)}, {S(sT1)}")
    a("s_waitcnt vmcnt(0)")
    for b3 in range(3):
        b = accv(b3, 0)
        for i in range(4):
            r0, r1 = b+2*i, b+2*i+1
            a(f"v_cvt_pk_bf16_f32 {V(t)}, {V(r0)}, {V(r1)}")
            a(f"v_lshlrev_b32 {V(r0)}, 16, {V(t)}\nv_and_b32 {V(r1)}, 0xffff0000, {V(t)}")
            a(f"v_mul_f32 {V(r0)}, {V(r0)}, {V(gg)}\nv_mul_f32 {V(r1)}, {V(r1)}, {V(gg)}")
            a(f"v_cvt_pk_bf16_f32 {V(t)}, {V(r0)}, {V(r1)}")
            a(f"v_lshlrev_b32 {V(r0)}, 16, {V(t)}\nv_and_b32 {V(r1)}, 0xffff0000, {V(t)}")
            a(f"v_lshlrev_b32 {V(t+1)}, 16, {V(tin+4*b3+i)}\nv_and_b32 {V(t+2)}, 0xffff0000, {V(tin+4*b3+i)}")
            a(f"v_add_f32 {V(r0)}, {V(r0)}, {V(t+1)}\nv_add_f32 {V(r1)}, {V(r1)}, {V(t+2)}")
            a(f"v_cvt_pk_bf16_f32 {V(b+8+i)}, {V(r0)}, {V(r1)}")
        a(f"v_permlane32_swap_b32 {V(b+8)}, {V(b+10)}\nv_permlane32_swap_b32 {V(b+9)}, {V(b+11)}")
        a(f"buffer_store_dwordx4 {V(b+8,4)}, {V(vO)}, {S(sO,4)}, {S(sT0)} offen offset:{b3*64}")
    a(f"{Lend}:\ns_endpgm")
    return dict(name=name, grid=192, block=256, lds=OUT_LDS, desc=kernel_desc(name, va.hi, 0, 64))
```

```python
import sys
from common import *
from k1_lnqkv import gen_k1
from pgemm import gen_gemm1, gen_gemm2, gen_out
from attn import gen_attn

HDR = open("gated_mix__softmax_full_mha__mixer_token_mlp__prompt.s.ref").read().split("; Override launch")[0]

def build(gens, path):
    a = Asm()
    ks = [g(a) for g in gens]
    n = a.fix_hazards(verbose="-v" in sys.argv)
    out = HDR
    for k in ks: out += f"; @launch kernel={k['name']} grid=({k['grid']},1,1) block=({k['block']},1,1) lds={k['lds']}\n"
    out += '.amdgcn_target "amdgcn-amd-amdhsa--gfx950"\n.text\n' + a.text()
    out += '.section .rodata,"a"\n' + "\n".join(k["desc"] for k in ks) + "\n"
    open(path, "w").write(out)
    print("wrote", path, len(out), "bytes; nops inserted:", n)
    for k in ks: print(" ", k["name"], [l.strip() for l in k["desc"].split("\n") if "vgpr" in l or "accum" in l], "lds", k["lds"])

if __name__ == "__main__":
    build([gen_k1, gen_gemm1, gen_attn, gen_gemm2, gen_out], "gated_mix__softmax_full_mha__mixer_token_mlp__prompt.s")
```

```python
from common import *
from pgemm import common_setup

ATT_BUF = 20480
ATT_LDS = 4 * ATT_BUF

def body_attn(a, va, sid):
    NQ = 2
    sWS = 16
    sWave, sHead, sQg, sKV, sSrc, sM0, sCnt, sT0, sT1, sT2, sKb, sVb, sDb, sFlag, sTb = range(20, 35)
    stamp(a, 0)
    load_srd(a, sWS, "ws", 0)
    lane, hh, l31, t = common_setup(a, va, sWave)
    a(f"s_and_b32 {S(sHead)}, {S(sid)}, 7\ns_lshl_b32 {S(sHead)}, {S(sHead)}, 2\ns_lshr_b32 {S(sT0)}, {S(sid)}, 6\ns_add_u32 {S(sHead)}, {S(sHead)}, {S(sT0)}")
    a(f"s_bfe_u32 {S(sQg)}, {S(sid)}, 0x30003")
    a(f"s_lshl_b32 {S(sTb)}, {S(sQg)}, 3\ns_lshl_b32 {S(sT0)}, {S(sWave)}, 1\ns_add_u32 {S(sTb)}, {S(sTb)}, {S(sT0)}")
    a(f"s_mul_i32 {S(sKV)}, {S(sHead)}, {KVH}\ns_add_u32 {S(sKV)}, {S(sKV)}, {WS_KV}")
    a(f"s_mul_i32 {S(sM0)}, {S(sWave)}, 5120\ns_add_u32 {S(sSrc)}, {S(sKV)}, {S(sM0)}")
    vL = va.alloc(); vK0t = va.alloc(); vV0 = va.alloc(); vK = va.alloc(); vKt = va.alloc(); vV = va.alloc(); vQt = va.alloc(); msk = va.alloc()
    Qm = va.alloc(4*NQ, 4); Qt = va.alloc(4*NQ, 4); O = va.alloc(16*NQ, 4); Sb = va.alloc(32, 4); P = va.alloc(8, 4)
    Km = va.alloc(4, 4); Kt = va.alloc(4, 4); V0 = va.alloc(4, 4); V1 = va.alloc(4, 4); mx = va.alloc(2)
    a(f"v_lshlrev_b32 {V(vL)}, 4, {V(lane)}")
    a(f"v_lshlrev_b32 {V(vK0t)}, 2, {V(l31)}")
    a(f"v_cmp_gt_u32 vcc, 32, {V(lane)}\nv_mov_b32 {V(t)}, {OOB}\nv_cndmask_b32 {V(vQt)}, {V(t)}, {V(vK0t)}, vcc\nv_cndmask_b32 {V(msk)}, 0, -1, vcc")
    a(f"v_add_u32 {V(vK0t)}, 8192, {V(vK0t)}")
    a(f"v_min_u32 {V(t)}, 18, {V(l31)}\nv_mul_u32_u24 {V(t+1)}, 320, {V(hh)}\nv_lshl_add_u32 {V(vV0)}, {V(t)}, 4, {V(t+1)}\nv_add_u32 {V(vV0)}, 9216, {V(vV0)}")
    a("s_waitcnt lgkmcnt(0)")
    fin_srd(a, sWS, "ws")
    a(f"s_lshl_b32 {S(sT0)}, {S(sHead)}, 6\ns_add_u32 {S(sT0)}, {S(sT0)}, {S(sTb)}\ns_lshl_b32 {S(sT1)}, {S(sT0)}, 7\ns_lshl_b32 {S(sT0)}, {S(sT0)}, 10")
    a(f"s_add_u32 {S(sT0)}, {S(sT0)}, {WS_QF}\ns_add_u32 {S(sT1)}, {S(sT1)}, {WS_QT}")
    for q in range(NQ):
        a(f"buffer_load_dwordx4 {V(Qm+4*q,4)}, {V(vL)}, {S(sWS,4)}, {S(sT0)} offen offset:{q*1024}")
        a(f"buffer_load_dword {V(Qt+4*q)}, {V(vQt)}, {S(sWS,4)}, {S(sT1)} offen offset:{q*128}")
    def dma_piece(i): return f"buffer_load_dwordx4 {V(vL)}, {S(sWS,4)}, {S(sSrc if i < 4 else sT0)} offen offset:{(i % 4)*1024} lds"
    def dma_chunk():
        a(f"s_add_u32 m0, {S(sDb)}, {S(sM0)}\ns_add_u32 {S(sT0)}, {S(sSrc)}, 4096")
        for i in range(4): a(dma_piece(i))
        a(f"s_add_u32 m0, m0, 4096\ns_add_u32 {S(sSrc)}, {S(sSrc)}, {KVCH}")
        a(dma_piece(4))
    def wrap(s):
        return [f"s_add_u32 {S(s)}, {S(s)}, {ATT_BUF}", f"s_cmp_eq_u32 {S(s)}, {ATT_LDS}", f"s_cselect_b32 {S(s)}, 0, {S(s)}"]
    a(f"s_mov_b32 {S(sDb)}, 0")
    for c in range(2):
        dma_chunk()
        for x in wrap(sDb): a(x)
    for q in range(NQ):
        for i in range(1, 4): a(f"v_mov_b32 {V(Qt+4*q+i)}, 0")
    a(f"v_mov_b32 {V(Kt+1)}, 0x3f803f80\nv_mov_b32 {V(Kt+2)}, 0x3f80\nv_mov_b32 {V(Kt+3)}, 0")
    for i in range(16*NQ): a(f"v_mov_b32 {V(O+i)}, 0")
    for i in range(4): a(f"v_mov_b32 {V(V1+i)}, 0\nv_mov_b32 {V(P+4+i)}, 0")
    a(f"v_mov_b32 {V(vK)}, {V(vL)}\nv_mov_b32 {V(vKt)}, {V(vK0t)}\nv_mov_b32 {V(vV)}, {V(vV0)}")
    a(f"s_mov_b32 {S(sKb)}, 0\ns_mov_b32 {S(sFlag)}, 0")
    stamp(a, 1)
    a("s_waitcnt vmcnt(5)\ns_barrier")
    stamp(a, 2)
    a(f"ds_read_b128 {V(Km,4)}, {V(vK)}\nds_read_b32 {V(Kt)}, {V(vKt)}\nds_read_b128 {V(V0,4)}, {V(vV)}")
    a("s_waitcnt lgkmcnt(1)")
    def smfma(buf, q):
        return mfma(Sb+16*buf, Km, Qm+4*q, "0"), mfma(Sb+16*buf, Kt, Qt+4*q)
    def rowmax(buf, dst, init):
        b = Sb + 16*buf
        if init:
            a(f"v_max3_f32 {V(dst)}, {V(b)}, {V(b+1)}, {V(b+2)}")
            for i in range(3, 15, 2): a(f"v_max3_f32 {V(dst)}, {V(dst)}, {V(b+i)}, {V(b+i+1)}")
            a(f"v_max_f32 {V(dst)}, {V(dst)}, {V(b+15)}")
        else:
            for i in range(0, 16, 2): a(f"v_max3_f32 {V(dst)}, {V(dst)}, {V(b+i)}, {V(b+i+1)}")
    def setm(q):
        m = mx + q
        a(f"v_mov_b32 {V(t)}, {V(m)}\nv_permlane32_swap_b32 {V(m)}, {V(t)}\nv_max_f32 {V(m)}, {V(m)}, {V(t)}")
        a(f"v_sub_f32 {V(m)}, 0, {V(m)}")
        a(f"v_and_b32 {V(t)}, 0xffff0000, {V(m)}\nv_sub_f32 {V(m)}, {V(m)}, {V(t)}")
        a(f"v_and_b32 {V(t+1)}, 0xffff0000, {V(m)}\nv_sub_f32 {V(m)}, {V(m)}, {V(t+1)}")
        a(f"v_lshrrev_b32 {V(t)}, 16, {V(t)}\nv_or_b32 {V(t)}, {V(t)}, {V(t+1)}\nv_and_b32 {V(Qt+4*q+1)}, {V(t)}, {V(msk)}")
        a(f"v_lshrrev_b32 {V(m)}, 16, {V(m)}\nv_and_b32 {V(Qt+4*q+2)}, {V(m)}, {V(msk)}")
    for q in range(NQ):
        for m in smfma(q, q): a(m)
    for q in range(NQ):
        rowmax(q, mx+q, True); setm(q)
    for m in smfma(0, 0): a(m)
    a("s_nop 7")
    stamp(a, 3)
    a(f"s_mov_b32 {S(sCnt)}, 0")
    L = a.label("ATT")
    a(f".p2align 4\n{L}:")
    post = {(u, p): [] for u in range(16) for p in range(4)}
    for tl in range(8):
        nt = (tl + 1) % 8; ev = 2*tl; od = ev + 1
        post[ev, 0].append(f"ds_read_b128 {V(Km,4)}, {V(vK)} offset:{nt*1024}")
        post[ev, 1].append(f"ds_read_b32 {V(Kt)}, {V(vKt)} offset:{nt*128}")
        post[ev, 2] += ["s_waitcnt lgkmcnt(2)", f"ds_read_b128 {V(V1,4)}, {V(vV)} offset:{tl*1280 + 640}"]
        post[ev, 3].append("s_waitcnt lgkmcnt(1)")
        post[od, 1].append("s_waitcnt lgkmcnt(0)")
        post[od, 3].append(f"ds_read_b128 {V(V0,4)}, {V(vV)} offset:{nt*1280}")
    free = [(u, p) for u in range(1, 16, 2) for p in (0, 2)]
    seq = [[f"s_cmp_ge_u32 {S(sCnt)}, 6"], [f"s_cselect_b32 {S(sSrc)}, {OOB}, {S(sSrc)}"],
           [f"s_add_u32 m0, {S(sDb)}, {S(sM0)}"], [f"s_add_u32 {S(sT0)}, {S(sSrc)}, 4096", dma_piece(0)], [dma_piece(1)], [dma_piece(2)], [dma_piece(3)],
           [f"s_add_u32 m0, m0, 4096"], [f"s_add_u32 {S(sSrc)}, {S(sSrc)}, {KVCH}", dma_piece(4)],
           wrap(sDb)[:1], wrap(sDb)[1:], wrap(sKb)[:1], wrap(sKb)[1:],
           ["s_waitcnt vmcnt(5)", "s_barrier"], [f"s_add_u32 {S(sCnt)}, {S(sCnt)}, 1"], [f"s_cmp_lt_u32 {S(sCnt)}, 8"]]
    assert len(seq) == len(free) and free[13] == (13, 2)
    for k, x in zip(free, seq): post[k] += x
    post[13, 3] += [f"v_add_u32 {V(vK)}, {S(sKb)}, {V(vL)}", f"v_add_u32 {V(vKt)}, {S(sKb)}, {V(vK0t)}"]
    post[15, 1] += [f"v_add_u32 {V(vV)}, {S(sKb)}, {V(vV0)}"]
    for u in range(16):
        tl, q = divmod(u, 2)
        b = Sb + 16*(u % 2)
        e = lambda i: f"v_exp_f32 {V(b+i)}, {V(b+i)}"
        c = lambda i: f"v_cvt_pk_bf16_f32 {V(P+i)}, {V(b+2*i)}, {V(b+2*i+1)}"
        g = [[e(0), e(1), e(2), c(0), e(3), e(4)], [c(1), e(5), e(6), c(2), e(7), e(8)],
             [c(3), e(9), e(10), c(4), e(11), e(12)], [c(5), e(13), e(14), e(15), c(6), c(7)]]
        s0, s1 = smfma((u+1) % 2, (q+1) % 2)
        ms = [s0, s1, mfma(O+16*((q+1) % 2), V1, P+4), mfma(O+16*q, V0, P)]
        for p in range(4):
            a(ms[p])
            for x in post[u, p]: a(x)
            for x in g[p]: a(x)
    a(f"s_cbranch_scc1 {L}")
    a(mfma(O+16, V1, P+4))
    stamp(a, 4)
    Lfin = a.label("ATTFIN"); Lfb = a.label("ATTFB")
    a("s_waitcnt vmcnt(0) lgkmcnt(0)")
    a(f"s_mov_b32 {S(sT0)}, {f32(2.0**40)}")
    a(f"v_cmp_nge_f32 vcc, {S(sT0)}, {V(O+10)}\nv_cmp_nge_f32 {S(40,2)}, {S(sT0)}, {V(O+26)}")
    a(f"s_nop 1\ns_or_b64 vcc, vcc, {S(40,2)}\ns_nop 4\ns_cbranch_vccnz {Lfb}")
    a(f"{Lfin}:")
    a(f"s_lshr_b32 {S(sT0)}, {S(sHead)}, 3\ns_mul_i32 {S(sT0)}, {S(sT0)}, 9\ns_mul_i32 {S(sT1)}, {S(sTb)}, 36\ns_add_u32 {S(sT0)}, {S(sT0)}, {S(sT1)}")
    a(f"s_add_u32 {S(sT1)}, {S(sT0)}, 8\ns_and_b32 {S(sT2)}, {S(sHead)}, 7\ns_add_u32 {S(sT0)}, {S(sT0)}, {S(sT2)}")
    a(f"s_lshl_b32 {S(sT0)}, {S(sT0)}, 10\ns_add_u32 {S(sT0)}, {S(sT0)}, {WS_OF}\ns_lshl_b32 {S(sT1)}, {S(sT1)}, 10\ns_add_u32 {S(sT1)}, {S(sT1)}, {WS_OF}")
    a(f"s_bfe_u32 {S(sT2)}, {S(sHead)}, 0x10002\ns_lshl_b32 {S(sT2)}, {S(sT2)}, 9\ns_add_u32 {S(sT1)}, {S(sT1)}, {S(sT2)}")
    a(f"s_and_b32 {S(sT2)}, {S(sHead)}, 3\ns_lshl_b32 {S(sT2)}, {S(sT2)}, 2\ns_add_u32 {S(sT1)}, {S(sT1)}, {S(sT2)}")
    a(f"v_cmp_gt_u32 vcc, 32, {V(lane)}\nv_mov_b32 {V(t)}, {OOB}\nv_cndmask_b32 {V(t+1)}, {V(t)}, {V(vL)}, vcc")
    for q in range(NQ):
        o = O + 16*q
        a(f"v_rcp_f32 {V(t)}, {V(o+10)}")
        for i in range(10): a(f"v_mul_f32 {V(o+i)}, {V(o+i)}, {V(t)}")
        for i in range(4): a(f"v_cvt_pk_bf16_f32 {V(o+12+i)}, {V(o+2*i)}, {V(o+2*i+1)}")
        a(f"v_cvt_pk_bf16_f32 {V(o+11)}, {V(o+8)}, {V(o+9)}")
        a(f"buffer_store_dwordx4 {V(o+12,4)}, {V(vL)}, {S(sWS,4)}, {S(sT0)} offen")
        a(f"buffer_store_dword {V(o+11)}, {V(t+1)}, {S(sWS,4)}, {S(sT1)} offen")
        if q + 1 < NQ: a(f"s_add_u32 {S(sT0)}, {S(sT0)}, {36*1024}\ns_add_u32 {S(sT1)}, {S(sT1)}, {36*1024}")
    prof_end(a, 2)
    a("s_endpgm")
    a(f"{Lfb}:")
    def tile_off():
        a(f"s_lshr_b32 {S(sT0)}, {S(sCnt)}, 3\ns_mul_i32 {S(sT0)}, {S(sT0)}, {KVCH}\ns_add_u32 {S(sT0)}, {S(sT0)}, {S(sKV)}\ns_and_b32 {S(sT2)}, {S(sCnt)}, 7")
        a(f"s_lshl_b32 {S(sT1)}, {S(sT2)}, 10\ns_add_u32 {S(sT1)}, {S(sT1)}, {S(sT0)}")
        a(f"buffer_load_dwordx4 {V(Km,4)}, {V(vL)}, {S(sWS,4)}, {S(sT1)} offen")
        a(f"s_lshl_b32 {S(sT1)}, {S(sT2)}, 7\ns_add_u32 {S(sT1)}, {S(sT1)}, {S(sT0)}")
        a(f"buffer_load_dword {V(Kt)}, {V(vK0t)}, {S(sWS,4)}, {S(sT1)} offen")
    for q in range(NQ):
        a(f"v_mov_b32 {V(Qt+4*q+1)}, 0\nv_mov_b32 {V(Qt+4*q+2)}, 0\nv_mov_b32 {V(mx+q)}, 0xff800000")
    for i in range(16*NQ): a(f"v_mov_b32 {V(O+i)}, 0")
    a(f"s_mov_b32 {S(sCnt)}, 0")
    L1 = a.label("ATTF1"); L2 = a.label("ATTF2")
    a(f"{L1}:")
    tile_off()
    a("s_waitcnt vmcnt(0)")
    for q in range(NQ):
        for m in smfma(q, q): a(m)
    for q in range(NQ): rowmax(q, mx+q, False)
    a(f"s_add_u32 {S(sCnt)}, {S(sCnt)}, 1\ns_cmp_lt_u32 {S(sCnt)}, 64\ns_cbranch_scc1 {L1}")
    for q in range(NQ): setm(q)
    a(f"s_mov_b32 {S(sCnt)}, 0")
    a(f"{L2}:")
    tile_off()
    a(f"s_mul_i32 {S(sT1)}, {S(sT2)}, 1280\ns_add_u32 {S(sT1)}, {S(sT1)}, {S(sT0)}")
    a(f"buffer_load_dwordx4 {V(V0,4)}, {V(vV0)}, {S(sWS,4)}, {S(sT1)} offen")
    a(f"buffer_load_dwordx4 {V(V1,4)}, {V(vV0)}, {S(sWS,4)}, {S(sT1)} offen offset:640")
    a("s_waitcnt vmcnt(0)")
    for q in range(NQ):
        for m in smfma(q, q): a(m)
    for q in range(NQ):
        b = Sb + 16*q
        for i in range(16): a(f"v_exp_f32 {V(b+i)}, {V(b+i)}")
        for i in range(8): a(f"v_cvt_pk_bf16_f32 {V(P+i)}, {V(b+2*i)}, {V(b+2*i+1)}")
        a(mfma(O+16*q, V0, P)); a(mfma(O+16*q, V1, P+4))
    a(f"s_add_u32 {S(sCnt)}, {S(sCnt)}, 1\ns_cmp_lt_u32 {S(sCnt)}, 64\ns_cbranch_scc1 {L2}")
    a(f"s_nop 15\ns_branch {Lfin}")

def gen_attn(a, name="attn_kernel"):
    va = RegAlloc("v", 1, 256)
    kernel_begin(a, name)
    Lend = a.label("AEND")
    a(f"s_cmp_ge_u32 s2, 256\ns_cbranch_scc1 {Lend}")
    body_attn(a, va, 2)
    a(f"{Lend}:\ns_endpgm")
    return dict(name=name, grid=256, block=256, lds=ATT_LDS, desc=kernel_desc(name, va.hi, 0, 64))

from pgemm import body_gemm2
def gen_fused(a, name="attg2_kernel", att_first=True, prio_att=0, prio_g=0):
    kernel_begin(a, name)
    Lend = a.label("FEND"); Lb = a.label("FB")
    va1 = RegAlloc("v", 1, 256); va2 = RegAlloc("v", 1, 256)
    if att_first:
        a(f"s_cmp_ge_u32 s2, 448\ns_cbranch_scc1 {Lend}\ns_cmp_ge_u32 s2, 256\ns_cbranch_scc1 {Lb}")
        if prio_att: a(f"s_setprio {prio_att}")
        body_attn(a, va1, 2)
        a(f"{Lb}:\ns_sub_u32 s2, s2, 256")
        if prio_g: a(f"s_setprio {prio_g}")
        body_gemm2(a, va2, 2)
        grid = 448
    else:
        a(f"s_cmp_ge_u32 s2, 512\ns_cbranch_scc1 {Lend}\ns_cmp_ge_u32 s2, 256\ns_cbranch_scc1 {Lb}\ns_cmp_ge_u32 s2, 192\ns_cbranch_scc1 {Lend}")
        if prio_g: a(f"s_setprio {prio_g}")
        body_gemm2(a, va2, 2)
        a(f"{Lb}:\ns_sub_u32 s2, s2, 256")
        if prio_att: a(f"s_setprio {prio_att}")
        body_attn(a, va1, 2)
        grid = 512
    a(f"{Lend}:\ns_endpgm")
    return dict(name=name, grid=grid, block=256, lds=ATT_LDS, desc=kernel_desc(name, max(va1.hi, va2.hi), 0, 64))
```

```python
from asmlib import *
import math
S_, D_, H_, DH_, F_ = 2048, 576, 32, 18, 4608
KA = dict(x=0, wqkv=8, wo=16, w1=32, b1=40, w2=48, b2=56, gw=64, out=72, dbg=80, ws=88)
NB = dict(x=S_*D_*2, wqkv=D_*3*D_*2, wo=D_*D_*2, w1=S_*F_*2, b1=F_*2, w2=F_*S_*2, b2=S_*2, gw=D_*2, out=S_*D_*2, dbg=256)
WS_HT = 4096
WS_U = WS_HT + 6*128*3*1024
WS_QF = WS_U + 6*288*3*1024
WS_QT = WS_QF + 32*64*1024
KVCH = 19456
KVH = 8*KVCH
WS_KV = WS_QT + 32*2048*4
WS_G = WS_KV + 32*KVH
WS_OF = WS_G + 2048*8
WS_T = WS_OF + 64*36*1024
WS_END = WS_T + 192*12*1024
WS_PROF = WS_END
NB["ws"] = WS_END
CFG = dict(N1=4, N2=6, att_first=True, prio_att=0, prio_g=0)
PROF = {"on": False, "k": 0}
PROF_BYTES = 4*1024*4*256
def prof_enable():
    PROF["on"] = True; NB["ws"] = WS_END + PROF_BYTES
def stamp(a, i):
    if not PROF["on"]: return
    if i == 0: a("v_mov_b32 v255, 0\ns_memrealtime s[98:99]\ns_mov_b32 s97, s2")
    a(f"{'s_memtime' if i == 0 else 's_memrealtime'} s[100:101]\ns_waitcnt lgkmcnt(0)\nv_writelane_b32 v255, s100, {i}")
    if i == 0: a("v_writelane_b32 v255, s98, 32")
def prof_end(a, kidx, sWS=16):
    if not PROF["on"]: return
    a("s_waitcnt vmcnt(0)\ns_memtime s[100:101]\ns_memrealtime s[98:99]\ns_waitcnt lgkmcnt(0)\nv_writelane_b32 v255, s100, 31\nv_writelane_b32 v255, s98, 33")
    a(f"s_lshl_b32 s97, s97, 10\ns_add_u32 s97, s97, {WS_PROF + kidx*1024*1024}\nv_lshlrev_b32 v254, 2, v0")
    a(f"buffer_store_dword v255, v254, s[{sWS}:{sWS+3}], s97 offen")
OOB = 0x40000000
QSCALE = math.log2(math.e) / math.sqrt(18.0)

import struct
def f32(x): return "0x%08x" % struct.unpack("<I", struct.pack("<f", x))[0]

class VmTrack:
    def __init__(self): self.q = []
    def issue(self, tag, n=1): self.q += [tag] * n
    def wait(self, tag):
        idx = max(i for i, t in enumerate(self.q) if t == tag)
        n = len(self.q) - 1 - idx
        self.q = self.q[idx + 1:]
        assert n <= 63, n
        return n

def load_srd(a, sreg, name, tmp):
    a(f"s_load_dwordx2 {S(sreg,2)}, s[0:1], {KA[name]}")
def fin_srd(a, sreg, name):
    a(f"s_and_b32 {S(sreg+1)}, {S(sreg+1)}, 0xffff")
    a(f"s_mov_b32 {S(sreg+2)}, {NB[name]}")
    a(f"s_mov_b32 {S(sreg+3)}, 0x20000")

def kernel_begin(a, name):
    a(f".globl {name}\n.p2align 8\n.type {name},@function\n{name}:")

def kernel_desc(name, nvgpr, nagpr=0, nsgpr=96):
    if PROF["on"]: nvgpr = 256; nsgpr = 102
    acc = (nvgpr + 3) // 4 * 4
    tot = acc + nagpr if nagpr else nvgpr
    return "\n".join([".p2align 6", f".amdhsa_kernel {name}", f"  .amdhsa_next_free_vgpr {tot}", f"  .amdhsa_next_free_sgpr {nsgpr}",
        f"  .amdhsa_accum_offset {acc}", "  .amdhsa_group_segment_fixed_size 0", "  .amdhsa_kernarg_size 96", "  .amdhsa_user_sgpr_count 2",
        "  .amdhsa_user_sgpr_kernarg_segment_ptr 1", "  .amdhsa_system_sgpr_workgroup_id_x 1", "  .amdhsa_float_denorm_mode_32 3",
        ".end_amdhsa_kernel"])

def mfma(d, x, y, c=None, acc="v"):
    cc = R(acc, d, 16) if c is None else c
    return f"v_mfma_f32_32x32x16_bf16 {R(acc, d, 16)}, {V(x,4)}, {V(y,4)}, {cc}"

def allreduce32(a, v, t, op="v_add_f32"):
    m = "row_mask:0xf bank_mask:0xf"
    a(f"{op}_dpp {V(v)}, {V(v)}, {V(v)} quad_perm:[1,0,3,2] {m}")
    a(f"{op}_dpp {V(v)}, {V(v)}, {V(v)} quad_perm:[2,3,0,1] {m}")
    a(f"{op}_dpp {V(v)}, {V(v)}, {V(v)} row_half_mirror {m}")
    a(f"{op}_dpp {V(v)}, {V(v)}, {V(v)} row_mirror {m}")
    a(f"v_mov_b32 {V(t)}, {V(v)}")
    a(f"v_permlane16_swap_b32 {V(v)}, {V(t)}")
    a(f"{op} {V(v)}, {V(v)}, {V(t)}")

def rnd_bf16(a, dst, src):
    a(f"v_cvt_pk_bf16_f32 {V(dst)}, {V(src)}, {V(src)}")
    a(f"v_and_b32 {V(dst)}, 0xffff0000, {V(dst)}")
```

```python
import sys
from common import *
from k1_lnqkv import gen_k1
from pgemm import gen_gemm1, gen_gemm2, gen_out
from attn import gen_attn

HDR = open("gated_mix__softmax_full_mha__mixer_token_mlp__prompt.s.ref").read().split("; Override launch")[0]

def build(gens, path):
    a = Asm()
    ks = [g(a) for g in gens]
    n = a.fix_hazards(verbose="-v" in sys.argv)
    out = HDR
    for k in ks: out += f"; @launch kernel={k['name']} grid=({k['grid']},1,1) block=({k['block']},1,1) lds={k['lds']}\n"
    out += '.amdgcn_target "amdgcn-amd-amdhsa--gfx950"\n.text\n' + a.text()
    out += '.section .rodata,"a"\n' + "\n".join(k["desc"] for k in ks) + "\n"
    open(path, "w").write(out)
    print("wrote", path, len(out), "bytes; nops inserted:", n)
    for k in ks: print(" ", k["name"], [l.strip() for l in k["desc"].split("\n") if "vgpr" in l or "accum" in l], "lds", k["lds"])

if __name__ == "__main__":
    from attn import gen_fused
    path = "gated_mix__softmax_full_mha__mixer_token_mlp__prompt.s"
    for arg in sys.argv[1:]:
        if "=" in arg:
            k, v = arg.split("=")
            if k == "out": path = v
            else: CFG[k] = int(v)
    if "--prof" in sys.argv: prof_enable()
    fused = lambda a: gen_fused(a, att_first=CFG["att_first"], prio_att=CFG["prio_att"], prio_g=CFG["prio_g"])
    if CFG.get('unfused'): build([gen_k1, gen_gemm1, gen_attn, gen_gemm2, gen_out], path)
    else: build([gen_k1, gen_gemm1, fused, gen_out], path)
```

```python
from common import *

X_LDS = 0
W_LDS = 65536
LN_LDS = W_LDS + 4*20480
LN_ROW = 1216
K1_LDS = LN_LDS + 8*LN_ROW + 512

def gen_k1(a, name="lnqkv_kernel"):
    va = RegAlloc("v", 1, 256)
    kernel_begin(a, name)
    Lend = a.label("K1END"); Lln = a.label("K1LNONLY"); Lv = a.label("K1V")
    sX, sW, sG, sWS = 4, 8, 12, 16
    sWave, sTg, sNg, sXoff, sWoff, sXm0, sWm0, sPart, sHg, sT0, sT1, sT2, sMain, sHs, sTail, sTs = range(20, 36)
    a(f"s_cmp_ge_u32 s2, 256\ns_cbranch_scc1 {Lend}")
    stamp(a, 0)
    for r, n in ((sX, "x"), (sW, "wqkv"), (sG, "gw"), (sWS, "ws")): load_srd(a, r, n, 0)
    lane = va.alloc(); hh = va.alloc(); l31 = va.alloc(); t0 = va.alloc(); t1 = va.alloc(); t2 = va.alloc(); t3 = va.alloc()
    a(f"v_and_b32 {V(lane)}, 63, v0\nv_lshrrev_b32 {V(t0)}, 6, v0\nv_readfirstlane_b32 {S(sWave)}, {V(t0)}")
    a(f"v_lshrrev_b32 {V(hh)}, 5, {V(lane)}\nv_and_b32 {V(l31)}, 31, {V(lane)}")
    a("s_waitcnt lgkmcnt(0)")
    for r, n in ((sX, "x"), (sW, "wqkv"), (sG, "gw"), (sWS, "ws")): fin_srd(a, r, n)

    xr = va.alloc(9); gr = va.alloc(9)
    lnoff = va.alloc(); goff = va.alloc()
    a(f"s_lshl_b32 {S(sT0)}, {S(sWave)}, 1")
    a(f"v_add_u32 {V(t0)}, {S(sT0)}, {V(hh)}")
    a(f"v_mul_u32_u24 {V(lnoff)}, 1152, {V(t0)}")
    a(f"v_lshlrev_b32 {V(goff)}, 2, {V(l31)}")
    a(f"v_add_u32 {V(lnoff)}, {V(lnoff)}, {V(goff)}")
    a(f"s_mul_i32 {S(sT1)}, s2, 9216")
    for m in range(9): a(f"buffer_load_dword {V(xr+m)}, {V(lnoff)}, {S(sX,4)}, {S(sT1)} offen offset:{m*128}")
    for m in range(9): a(f"buffer_load_dword {V(gr+m)}, {V(goff)}, {S(sG,4)}, 0 offen offset:{m*128}")
    ltok = va.alloc()
    a(f"v_mov_b32 {V(ltok)}, {V(t0)}")

    def ln_body(vm, nafter):
        mk = va.mark()
        xf = va.alloc(18); acc = va.alloc(); acc2 = va.alloc(); gz = va.alloc(); tt = va.alloc(); mean = va.alloc(); rs = va.alloc()
        gg = va.alloc(2, 2); hb = va.alloc(9); wad = va.alloc(); rad = va.alloc(); tr = va.alloc(12, 4); sad = va.alloc(3)
        a(f"s_waitcnt vmcnt({nafter})")
        for m in range(9):
            a(f"v_lshlrev_b32 {V(xf+2*m)}, 16, {V(xr+m)}\nv_and_b32 {V(xf+2*m+1)}, 0xffff0000, {V(xr+m)}")
        a(f"v_add_f32 {V(acc)}, {V(xf)}, {V(xf+1)}")
        for i in range(2, 18): a(f"v_add_f32 {V(acc)}, {V(acc)}, {V(xf+i)}")
        a(f"v_mov_b32 {V(gz)}, 0")
        for m in range(9):
            a(f"v_lshlrev_b32 {V(t1)}, 16, {V(gr+m)}\nv_and_b32 {V(t2)}, 0xffff0000, {V(gr+m)}")
            a(f"v_mul_f32 {V(t1)}, {V(t1)}, {V(xf+2*m)}\nv_mul_f32 {V(t2)}, {V(t2)}, {V(xf+2*m+1)}")
            a(f"v_cvt_pk_bf16_f32 {V(t3)}, {V(t1)}, {V(t2)}")
            a(f"v_lshlrev_b32 {V(t1)}, 16, {V(t3)}\nv_and_b32 {V(t2)}, 0xffff0000, {V(t3)}")
            a(f"v_add_f32 {V(gz)}, {V(gz)}, {V(t1)}\nv_add_f32 {V(gz)}, {V(gz)}, {V(t2)}")
        allreduce32(a, acc, tt)
        allreduce32(a, gz, tt)
        a(f"v_mul_f32 {V(mean)}, {f32(1.0/576)}, {V(acc)}")
        a(f"v_mov_b32 {V(acc2)}, 0")
        for i in range(18):
            a(f"v_sub_f32 {V(t1)}, {V(xf+i)}, {V(mean)}\nv_fmac_f32 {V(acc2)}, {V(t1)}, {V(t1)}")
        allreduce32(a, acc2, tt)
        a(f"v_mul_f32 {V(acc2)}, {f32(1.0/576)}, {V(acc2)}")
        rnd_bf16(a, acc2, acc2)
        a(f"v_add_f32 {V(acc2)}, {f32(1e-5)}, {V(acc2)}")
        rnd_bf16(a, acc2, acc2)
        a(f"v_sqrt_f32 {V(acc2)}, {V(acc2)}")
        rnd_bf16(a, acc2, acc2)
        a(f"v_rcp_f32 {V(rs)}, {V(acc2)}")
        rnd_bf16(a, mean, mean)
        for m in range(9):
            a(f"v_sub_f32 {V(t1)}, {V(xf+2*m)}, {V(mean)}\nv_sub_f32 {V(t2)}, {V(xf+2*m+1)}, {V(mean)}")
            a(f"v_cvt_pk_bf16_f32 {V(t3)}, {V(t1)}, {V(t2)}")
            a(f"v_lshlrev_b32 {V(t1)}, 16, {V(t3)}\nv_and_b32 {V(t2)}, 0xffff0000, {V(t3)}")
            a(f"v_mul_f32 {V(t1)}, {V(t1)}, {V(rs)}\nv_mul_f32 {V(t2)}, {V(t2)}, {V(rs)}")
            a(f"v_cvt_pk_bf16_f32 {V(hb+m)}, {V(t1)}, {V(t2)}")
        a(f"v_mul_u32_u24 {V(wad)}, {LN_ROW}, {V(ltok)}")
        a(f"v_add_u32 {V(wad)}, {V(wad)}, {V(goff)}")
        a(f"v_add_u32 {V(wad)}, {LN_LDS}, {V(wad)}")
        for m in range(9): a(f"ds_write_b32 {V(wad)}, {V(hb+m)} offset:{m*128}")
        rnd_bf16(a, gz, gz)
        a(f"v_mul_f32 {V(gz)}, {f32(-math.log2(math.e))}, {V(gz)}")
        a(f"v_exp_f32 {V(gz)}, {V(gz)}")
        a(f"v_add_f32 {V(gz)}, 1.0, {V(gz)}")
        a(f"v_rcp_f32 {V(gz)}, {V(gz)}")
        rnd_bf16(a, gg, gz)
        a(f"v_sub_f32 {V(gg+1)}, 1.0, {V(gg)}")
        rnd_bf16(a, gg+1, gg+1)
        a(f"v_lshlrev_b32 {V(t1)}, 3, {V(ltok)}")
        a(f"s_lshl_b32 {S(sT0)}, s2, 6\ns_add_u32 {S(sT0)}, {S(sT0)}, {WS_G}")
        a(f"buffer_store_dwordx2 {V(gg,2)}, {V(t1)}, {S(sWS,4)}, {S(sT0)} offen"); vm.issue("lnst")
        a(f"v_bfe_u32 {V(t1)}, {V(lane)}, 2, 2\nv_mul_u32_u24 {V(rad)}, {LN_ROW}, {V(t1)}")
        a(f"v_lshrrev_b32 {V(t1)}, 4, {V(lane)}\nv_lshlrev_b32 {V(t1)}, 5, {V(t1)}\nv_add_u32 {V(rad)}, {V(rad)}, {V(t1)}")
        a(f"v_and_b32 {V(t1)}, 3, {V(lane)}\nv_lshlrev_b32 {V(t1)}, 3, {V(t1)}\nv_add_u32 {V(rad)}, {V(rad)}, {V(t1)}")
        a(f"s_lshl_b32 {S(sT0)}, {S(sWave)}, 7\ns_add_u32 {S(sT0)}, {S(sT0)}, {LN_LDS}")
        a(f"v_add_u32 {V(rad)}, {S(sT0)}, {V(rad)}")
        a(f"s_lshl_b32 {S(sT0)}, {S(sWave)}, 1")
        for i in range(3):
            a(f"v_add_u32 {V(t1)}, {S(sT0)}, {V(hh)}")
            if i: a(f"v_add_u32 {V(t1)}, {8*i}, {V(t1)}")
            a(f"v_mul_u32_u24 {V(t2)}, 43, {V(t1)}\nv_lshrrev_b32 {V(t2)}, 7, {V(t2)}")
            a(f"v_mul_u32_u24 {V(t3)}, 3, {V(t2)}\nv_sub_u32 {V(t3)}, {V(t1)}, {V(t3)}")
            a(f"v_mul_u32_u24 {V(t2)}, 393216, {V(t2)}")
            a(f"v_lshl_add_u32 {V(t2)}, {V(t3)}, 10, {V(t2)}")
            a(f"v_lshl_add_u32 {V(sad+i)}, {V(l31)}, 4, {V(t2)}")
            if i == 2:
                a(f"v_cmp_lt_u32 vcc, 17, {V(t1)}\nv_mov_b32 {V(t2)}, {OOB}\nv_cndmask_b32 {V(sad+i)}, {V(sad+i)}, {V(t2)}, vcc")
        a(f"s_lshr_b32 {S(sT0)}, s2, 1\ns_mul_i32 {S(sT0)}, {S(sT0)}, 3072\ns_and_b32 {S(sT1)}, s2, 1\ns_lshl_b32 {S(sT1)}, {S(sT1)}, 9")
        a(f"s_add_u32 {S(sT0)}, {S(sT0)}, {S(sT1)}\ns_add_u32 {S(sT0)}, {S(sT0)}, {WS_HT}")
        a("s_waitcnt lgkmcnt(0)\ns_barrier")
        for i in range(3):
            a(f"ds_read_b64_tr_b16 {V(tr+4*i,2)}, {V(rad)} offset:{i*512}")
            a(f"ds_read_b64_tr_b16 {V(tr+4*i+2,2)}, {V(rad)} offset:{i*512 + 4*LN_ROW}")
        a("s_waitcnt lgkmcnt(0)")
        for i in range(3):
            a(f"buffer_store_dwordx4 {V(tr+4*i,4)}, {V(sad+i)}, {S(sWS,4)}, {S(sT0)} offen"); vm.issue("lnst")
        va.release(mk)

    a(f"s_cmp_ge_u32 s2, 192\ns_cbranch_scc1 {Lln}")
    a(f"s_and_b32 {S(sT0)}, s2, 3\ns_lshl_b32 {S(sT0)}, {S(sT0)}, 2\ns_bfe_u32 {S(sT1)}, s2, 0x20003\ns_add_u32 {S(sTg)}, {S(sT0)}, {S(sT1)}")
    a(f"s_bfe_u32 {S(sT0)}, s2, 0x10002\ns_mul_i32 {S(sT0)}, {S(sT0)}, 6\ns_lshr_b32 {S(sT1)}, s2, 5\ns_add_u32 {S(sNg)}, {S(sT0)}, {S(sT1)}")
    a(f"s_lshr_b32 {S(sPart)}, {S(sNg)}, 2\ns_and_b32 {S(sHg)}, {S(sNg)}, 3")
    a(f"s_mul_i32 {S(sXoff)}, {S(sTg)}, {128*1152}\ns_mul_i32 {S(sWoff)}, {S(sNg)}, 288")
    a(f"s_lshl_b32 {S(sXm0)}, {S(sWave)}, 12\ns_lshl_b32 {S(sWm0)}, {S(sWave)}, 10\ns_add_u32 {S(sWm0)}, {S(sWm0)}, {W_LDS}")
    xsrc = va.alloc(4); wsrc = va.alloc(5)
    a(f"s_lshl_b32 {S(sT0)}, {S(sWave)}, 5")
    for i in range(4):
        a(f"v_lshrrev_b32 {V(t1)}, 3, {V(lane)}\nv_add_u32 {V(t1)}, {8*i}, {V(t1)}")
        a(f"v_bfe_u32 {V(t2)}, {V(t1)}, 1, 3\nv_and_b32 {V(t3)}, 7, {V(lane)}\nv_xor_b32 {V(t2)}, {V(t2)}, {V(t3)}")
        a(f"v_add_u32 {V(t1)}, {S(sT0)}, {V(t1)}\nv_mul_u32_u24 {V(t1)}, 1152, {V(t1)}")
        a(f"v_lshl_add_u32 {V(xsrc+i)}, {V(t2)}, 4, {V(t1)}")
    a(f"s_lshl_b32 {S(sT0)}, {S(sWave)}, 6")
    for i in range(5):
        a(f"v_add_u32 {V(t1)}, {S(sT0)}, {V(lane)}")
        if i: a(f"v_add_u32 {V(t1)}, {256*i}, {V(t1)}")
        a(f"v_mul_u32_u24 {V(t2)}, 3641, {V(t1)}\nv_lshrrev_b32 {V(t2)}, 16, {V(t2)}")
        a(f"v_mul_u32_u24 {V(t3)}, 18, {V(t2)}\nv_sub_u32 {V(t3)}, {V(t1)}, {V(t3)}")
        a(f"v_mul_u32_u24 {V(t2)}, 3456, {V(t2)}")
        a(f"v_lshl_add_u32 {V(wsrc+i)}, {V(t3)}, 4, {V(t2)}")
        if i == 4:
            a(f"v_cmp_lt_u32 vcc, 1151, {V(t1)}\nv_mov_b32 {V(t2)}, {OOB}\nv_cndmask_b32 {V(wsrc+i)}, {V(wsrc+i)}, {V(t2)}, vcc")
    for idx in range(1280): assert (idx*3641) >> 16 == idx // 18
    vm = VmTrack()
    def dma_stage(st, vm):
        slot = st % 4
        a(f"s_add_u32 {S(sT0)}, {S(sXoff)}, {st*128}")
        a(f"s_add_u32 {S(sT1)}, {S(sWoff)}, {st*64*3456}")
        for i in range(4):
            a(f"s_add_u32 m0, {S(sXm0)}, {X_LDS + slot*16384 + i*1024}")
            a(f"buffer_load_dwordx4 {V(xsrc+i)}, {S(sX,4)}, {S(sT0)} offen lds")
        for i in range(5):
            a(f"s_add_u32 m0, {S(sWm0)}, {slot*20480 + i*4096}")
            a(f"buffer_load_dwordx4 {V(wsrc+i)}, {S(sW,4)}, {S(sT1)} offen lds")
        vm.issue(f"st{st}", 9)
    for st in range(4): dma_stage(st, vm)
    stamp(a, 1)
    ln_body(vm, 36)
    stamp(a, 2)
    xrd = va.alloc(4); wm = va.alloc(2); wt = va.alloc(2)
    a(f"v_bfe_u32 {V(t1)}, {V(l31)}, 1, 3")
    a(f"v_lshlrev_b32 {V(t2)}, 7, {V(l31)}\nv_add_u32 {V(t2)}, {S(sXm0)}, {V(t2)}")
    for ks in range(4):
        a(f"v_add_u32 {V(t3)}, {2*ks}, {V(hh)}\nv_xor_b32 {V(t3)}, {V(t3)}, {V(t1)}\nv_lshl_add_u32 {V(xrd+ks)}, {V(t3)}, 4, {V(t2)}")
    a(f"v_bfe_u32 {V(t1)}, {V(lane)}, 2, 2\nv_lshl_add_u32 {V(t1)}, {V(hh)}, 3, {V(t1)}\nv_mul_u32_u24 {V(t1)}, 288, {V(t1)}")
    a(f"v_add_u32 {V(t1)}, {W_LDS}, {V(t1)}")
    a(f"v_bfe_u32 {V(t2)}, {V(lane)}, 4, 1\nv_mul_u32_u24 {V(t2)}, 5, {V(t2)}\nv_and_b32 {V(t3)}, 3, {V(lane)}\nv_add_u32 {V(t2)}, {V(t2)}, {V(t3)}")
    a(f"v_lshl_add_u32 {V(wm)}, {V(t2)}, 3, {V(t1)}\nv_add_u32 {V(wm+1)}, 40960, {V(wm)}")
    a(f"v_mul_u32_u24 {V(t2)}, 72, {V(t3)}\nv_add3_u32 {V(wt)}, {V(t2)}, {V(t1)}, 32\nv_add_u32 {V(wt+1)}, 40960, {V(wt)}")
    acc = va.alloc(80, 4); xf = va.alloc(8, 4); wf = va.alloc(20, 4); pk = va.alloc(8, 4); so = va.alloc(); so2 = va.alloc()
    a(f"s_lshl_b32 {S(sT2)}, {S(sTg)}, 2\ns_add_u32 {S(sT2)}, {S(sT2)}, {S(sWave)}")

    def rd_x(k):
        st, ks = divmod(k, 4)
        a(f"ds_read_b128 {V(xf+4*(k%2),4)}, {V(xrd+ks)} offset:{(st%4)*16384}")
    def rd_w(k, j):
        st, ks = divmod(k, 4); slot = st % 4
        base = (wm if j < 4 else wt) + slot // 2
        off = (slot % 2)*20480 + ks*4608 + (j*72 if j < 4 else 0)
        a(f"ds_read_b64_tr_b16 {V(wf+4*j,2)}, {V(base)} offset:{off}")
        a(f"ds_read_b64_tr_b16 {V(wf+4*j+2,2)}, {V(base)} offset:{off+1152}")
    def mainloop(vm, vpart):
        a(f"s_waitcnt vmcnt({vm.wait('st0')})\ns_barrier")
        stamp(a, 3)
        rd_x(0)
        for j in range(5): rd_w(0, j)
        for k in range(36):
            st, ks = divmod(k, 4)
            last = k == 35
            if ks == 3 and not last:
                a(f"s_waitcnt vmcnt({vm.wait(f'st{st+1}')}) lgkmcnt(0)\ns_barrier")
                if st + 4 < 9: dma_stage(st + 4, vm)
            for j in range(5):
                if not (ks == 3 and not last):
                    n = (8 if j == 0 else 9) if not last else 2*(4-j)
                    a(f"s_waitcnt lgkmcnt({n})")
                x = xf + 4*(k % 2); w = wf + 4*j
                c = "0" if k == 0 else None
                a(mfma(acc+16*j, x, w, c) if vpart else mfma(acc+16*j, w, x, c))
                if not last:
                    if j == 0: rd_x(k+1)
                    rd_w(k+1, j)
    import copy
    vm2 = copy.deepcopy(vm)
    a(f"s_cmp_eq_u32 {S(sPart)}, 2\ns_cbranch_scc1 {Lv}")
    Lk = a.label("K1K"); Lqk = a.label("K1QK")
    a(f"s_cmp_eq_u32 {S(sPart)}, 1\ns_cbranch_scc1 {Lk}")
    a(f"s_lshl_b32 {S(sMain)}, {S(sHg)}, 19\ns_lshl_b32 {S(sT0)}, {S(sT2)}, 10\ns_add_u32 {S(sMain)}, {S(sMain)}, {S(sT0)}\ns_add_u32 {S(sMain)}, {S(sMain)}, {WS_QF}")
    a(f"s_mov_b32 {S(sHs)}, 65536\ns_mov_b32 {S(sTs)}, 8192")
    a(f"s_lshl_b32 {S(sTail)}, {S(sHg)}, 16\ns_lshl_b32 {S(sT0)}, {S(sT2)}, 7\ns_add_u32 {S(sTail)}, {S(sTail)}, {S(sT0)}\ns_add_u32 {S(sTail)}, {S(sTail)}, {WS_QT}")
    a(f"s_mov_b32 {S(sPart)}, {f32(QSCALE)}\ns_branch {Lqk}")
    a(f"{Lk}:")
    a(f"s_mul_i32 {S(sMain)}, {S(sHg)}, {8*KVH}\ns_lshr_b32 {S(sT0)}, {S(sT2)}, 3\ns_mul_i32 {S(sT0)}, {S(sT0)}, {KVCH}\ns_add_u32 {S(sMain)}, {S(sMain)}, {S(sT0)}")
    a(f"s_add_u32 {S(sMain)}, {S(sMain)}, {WS_KV}\ns_and_b32 {S(sT0)}, {S(sT2)}, 7\ns_lshl_b32 {S(sT1)}, {S(sT0)}, 7")
    a(f"s_add_u32 {S(sTail)}, {S(sMain)}, {S(sT1)}\ns_add_u32 {S(sTail)}, {S(sTail)}, 8192")
    a(f"s_lshl_b32 {S(sT0)}, {S(sT0)}, 10\ns_add_u32 {S(sMain)}, {S(sMain)}, {S(sT0)}")
    a(f"s_mov_b32 {S(sHs)}, {KVH}\ns_mov_b32 {S(sTs)}, {KVH}\ns_mov_b32 {S(sPart)}, 1.0")
    a(f"{Lqk}:")
    mainloop(vm, False)
    stamp(a, 4)
    a(f"v_lshlrev_b32 {V(so)}, 4, {V(lane)}")
    a(f"v_mul_lo_u32 {V(so2)}, {V(hh)}, {S(sTs)}\nv_lshlrev_b32 {V(so2)}, 1, {V(so2)}\nv_lshl_add_u32 {V(so2)}, {V(l31)}, 2, {V(so2)}")
    for j in range(4):
        for odd in range(2):
            b = acc + 16*j + 8*odd; p = pk + 4*odd
            for i in range(8): a(f"v_mul_f32 {V(b+i)}, {S(sPart)}, {V(b+i)}")
            for i in range(4): a(f"v_cvt_pk_bf16_f32 {V(p+i)}, {V(b+2*i)}, {V(b+2*i+1)}")
            a(f"buffer_store_dwordx4 {V(p,4)}, {V(so)}, {S(sWS,4)}, {S(sMain)} offen")
            a(f"s_add_u32 {S(sMain)}, {S(sMain)}, {S(sHs)}")
    b = acc + 64
    for i in range(8): a(f"v_mul_f32 {V(b+i)}, {S(sPart)}, {V(b+i)}")
    for i in range(4): a(f"v_cvt_pk_bf16_f32 {V(b+8+i)}, {V(b+2*i)}, {V(b+2*i+1)}")
    for i, mult in enumerate((0, 1, 4, 5)):
        a(f"s_mul_i32 {S(sT0)}, {S(sTs)}, {mult}\ns_add_u32 {S(sT0)}, {S(sT0)}, {S(sTail)}")
        a(f"buffer_store_dword {V(b+8+i)}, {V(so2)}, {S(sWS,4)}, {S(sT0)} offen")
    prof_end(a, 0)
    a("s_endpgm")
    a(f"{Lv}:")
    a(f"s_mul_i32 {S(sMain)}, {S(sHg)}, {8*KVH}\ns_lshr_b32 {S(sT0)}, {S(sT2)}, 3\ns_mul_i32 {S(sT0)}, {S(sT0)}, {KVCH}\ns_add_u32 {S(sMain)}, {S(sMain)}, {S(sT0)}")
    a(f"s_and_b32 {S(sT0)}, {S(sT2)}, 7\ns_mul_i32 {S(sT0)}, {S(sT0)}, 1280\ns_add_u32 {S(sMain)}, {S(sMain)}, {S(sT0)}\ns_add_u32 {S(sMain)}, {S(sMain)}, {WS_KV + 9216}")
    a(f"s_mov_b32 {S(sTail)}, {S(sMain)}\ns_mov_b32 {S(sHs)}, {KVH}")
    mainloop(vm2, True)
    stamp(a, 4)
    a(f"v_bfe_u32 {V(t1)}, {V(lane)}, 4, 1\nv_mul_u32_u24 {V(so)}, {KVH+32}, {V(t1)}\nv_mul_u32_u24 {V(t2)}, 320, {V(hh)}\nv_add_u32 {V(so)}, {V(so)}, {V(t2)}")
    a(f"v_and_b32 {V(t3)}, 15, {V(lane)}\nv_lshl_add_u32 {V(so)}, {V(t3)}, 4, {V(so)}")
    a(f"v_lshrrev_b32 {V(t3)}, 1, {V(t3)}\nv_mul_u32_u24 {V(so2)}, {KVH}, {V(t3)}\nv_add_u32 {V(so2)}, {V(so2)}, {V(t2)}")
    a(f"v_and_b32 {V(t2)}, 2, {V(lane)}\nv_xor_b32 {V(t2)}, 2, {V(t2)}\nv_lshlrev_b32 {V(t2)}, 3, {V(t2)}")
    a(f"v_cmp_eq_u32 vcc, 1, {V(t1)}\nv_cndmask_b32 {V(t2)}, {V(t2)}, 18, vcc")
    a(f"v_and_b32 {V(t3)}, 1, {V(lane)}\nv_add_u32 {V(t2)}, {V(t2)}, {V(t3)}\nv_lshl_add_u32 {V(so2)}, {V(t2)}, 4, {V(so2)}")
    for j in range(4):
        for grp in range(2):
            b = acc + 16*j + 8*grp; p = pk + 4*grp
            for i in range(4): a(f"v_cvt_pk_bf16_f32 {V(p+i)}, {V(b+2*i)}, {V(b+2*i+1)}")
            a(f"buffer_store_dwordx4 {V(p,4)}, {V(so)}, {S(sWS,4)}, {S(sMain)} offen offset:{grp*640}")
        a(f"s_add_u32 {S(sMain)}, {S(sMain)}, {2*KVH}")
    a(f"v_mov_b32 {V(t2)}, 0x3f803f80")
    for grp in range(2):
        b = acc + 64 + 8*grp; p = pk + 4*grp
        for i in range(4):
            a(f"v_cvt_pk_bf16_f32 {V(p+i)}, {V(b+2*i)}, {V(b+2*i+1)}")
            a(f"v_cndmask_b32 {V(p+i)}, {V(p+i)}, {V(t2)}, vcc")
        a(f"buffer_store_dwordx4 {V(p,4)}, {V(so2)}, {S(sWS,4)}, {S(sTail)} offen offset:{grp*640}")
    prof_end(a, 0)
    a("s_endpgm")
    a(f"{Lln}:")
    ln_body(VmTrack(), 0)
    prof_end(a, 0)
    a(f"{Lend}:\ns_endpgm")
    return dict(name=name, grid=256, block=256, lds=K1_LDS, desc=kernel_desc(name, va.hi, 0, 40))
```

```python
from m_common import *

ATT_BUF = 20480
ATT_LDS = 4 * ATT_BUF

def body_attn(a, va, kidx):
    sid = 2
    NQ = 2
    sHead, sQg, sKV, sSrc, sM0, sCnt, sT0, sT1, sT2, sKb, sVb, sDb, sFlag, sTb = range(21, 35)
    lane, hh, l31, t = vLane, vH, vL31, vT
    a(f"s_and_b32 {S(sHead)}, {S(sid)}, 7\ns_lshl_b32 {S(sHead)}, {S(sHead)}, 2\ns_lshr_b32 {S(sT0)}, {S(sid)}, 6\ns_add_u32 {S(sHead)}, {S(sHead)}, {S(sT0)}")
    a(f"s_bfe_u32 {S(sQg)}, {S(sid)}, 0x30003")
    a(f"s_lshl_b32 {S(sTb)}, {S(sQg)}, 3\ns_lshl_b32 {S(sT0)}, {S(sWave)}, 1\ns_add_u32 {S(sTb)}, {S(sTb)}, {S(sT0)}")
    a(f"s_mul_i32 {S(sKV)}, {S(sHead)}, {KVH}\ns_add_u32 {S(sKV)}, {S(sKV)}, {WS_KV}")
    a(f"s_mul_i32 {S(sM0)}, {S(sWave)}, 5120\ns_add_u32 {S(sSrc)}, {S(sKV)}, {S(sM0)}")
    gq = va.alloc(2); vK0t = va.alloc(); vV0 = va.alloc(); vK = va.alloc(); vKt = va.alloc(); vV = va.alloc(); vQt = va.alloc(); msk = va.alloc()
    Qm = va.alloc(4*NQ, 4); Qt = va.alloc(4*NQ, 4); O = va.alloc(16*NQ, 4); Sb = va.alloc(32, 4); P = va.alloc(8, 4)
    Km = va.alloc(4, 4); Kt = va.alloc(4, 4); V0 = va.alloc(4, 4); V1 = va.alloc(4, 4); mx = va.alloc(2)
    a(f"v_lshlrev_b32 {V(vK0t)}, 2, {V(l31)}")
    a(f"v_cmp_gt_u32 vcc, 32, {V(lane)}\nv_mov_b32 {V(t)}, {OOB}\nv_cndmask_b32 {V(vQt)}, {V(t)}, {V(vK0t)}, vcc\nv_cndmask_b32 {V(msk)}, 0, -1, vcc")
    a(f"v_add_u32 {V(vK0t)}, 8192, {V(vK0t)}")
    a(f"v_min_u32 {V(t)}, 19, {V(l31)}\nv_cmp_eq_u32 vcc, 22, {V(l31)}\nv_cndmask_b32 {V(t)}, {V(t)}, 18, vcc\nv_mul_u32_u24 {V(t+1)}, 320, {V(hh)}\nv_lshl_add_u32 {V(vV0)}, {V(t)}, 4, {V(t+1)}\nv_add_u32 {V(vV0)}, 9216, {V(vV0)}")
    if MODE["mega"]:
        Lp = a.label("APOLL")
        a(f"s_cmp_lg_u32 {S(sWave)}, 0\ns_cbranch_scc1 {Lp}")
        a(f"s_lshr_b32 {S(sT0)}, {S(sHead)}, 3\ns_lshl_b32 {S(sT0)}, {S(sT0)}, 8\ns_add_u32 {S(sT0)}, {S(sT0)}, {WS_FL+FQ_G*256}\nv_mov_b32 {V(t)}, 0")
        poll(a, sWS, t, S(sT0), t+1, sT1)
        a(f"{Lp}:\ns_barrier")
    stamp(a, 3)
    a(f"s_lshl_b32 {S(sT0)}, {S(sHead)}, 6\ns_add_u32 {S(sT0)}, {S(sT0)}, {S(sTb)}\ns_lshl_b32 {S(sT1)}, {S(sT0)}, 7\ns_lshl_b32 {S(sT0)}, {S(sT0)}, 10")
    a(f"s_add_u32 {S(sT0)}, {S(sT0)}, {WS_QF}\ns_add_u32 {S(sT1)}, {S(sT1)}, {WS_QT}")
    for q in range(NQ):
        a(f"buffer_load_dwordx4 {V(Qm+4*q,4)}, {V(vL)}, {S(sWS,4)}, {S(sT0)} offen offset:{q*1024}{SC()}")
        a(f"buffer_load_dword {V(Qt+4*q)}, {V(vQt)}, {S(sWS,4)}, {S(sT1)} offen offset:{q*128}{SC()}")
    def dma_piece(i): return f"buffer_load_dwordx4 {V(vL)}, {S(sWS,4)}, {S(sSrc if i < 4 else sT0)} offen offset:{(i % 4)*1024}{SC()} lds"
    def dma_chunk():
        a(f"s_add_u32 m0, {S(sDb)}, {S(sM0)}\ns_add_u32 {S(sT0)}, {S(sSrc)}, 4096")
        for i in range(4): a(dma_piece(i))
        a(f"s_add_u32 m0, m0, 4096\ns_add_u32 {S(sSrc)}, {S(sSrc)}, {KVCH}")
        a(dma_piece(4))
    def wrap(s):
        return [f"s_add_u32 {S(s)}, {S(s)}, {ATT_BUF}", f"s_cmp_eq_u32 {S(s)}, {ATT_LDS}", f"s_cselect_b32 {S(s)}, 0, {S(s)}"]
    a(f"s_mov_b32 {S(sDb)}, 0")
    for c in range(2):
        dma_chunk()
        for x in wrap(sDb): a(x)
    for q in range(NQ):
        for i in range(1, 4): a(f"v_mov_b32 {V(Qt+4*q+i)}, 0")
    a(f"v_mov_b32 {V(Kt+1)}, 0x3f803f80\nv_mov_b32 {V(Kt+2)}, 0x3f80\nv_mov_b32 {V(Kt+3)}, 0")
    for i in range(16*NQ): a(f"v_mov_b32 {V(O+i)}, 0")
    for i in range(4): a(f"v_mov_b32 {V(V1+i)}, 0\nv_mov_b32 {V(P+4+i)}, 0")
    a(f"v_mov_b32 {V(vK)}, {V(vL)}\nv_mov_b32 {V(vKt)}, {V(vK0t)}\nv_mov_b32 {V(vV)}, {V(vV0)}")
    a(f"s_mov_b32 {S(sKb)}, 0\ns_mov_b32 {S(sFlag)}, 0")
    a("s_waitcnt vmcnt(5)\ns_barrier")
    stamp(a, 4)
    a(f"ds_read_b128 {V(Km,4)}, {V(vK)}\nds_read_b32 {V(Kt)}, {V(vKt)}\nds_read_b128 {V(V0,4)}, {V(vV)}")
    a("s_waitcnt lgkmcnt(1)")
    def smfma(buf, q):
        return mfma(Sb+16*buf, Km, Qm+4*q, "0"), mfma(Sb+16*buf, Kt, Qt+4*q)
    def rowmax(buf, dst, init):
        b = Sb + 16*buf
        if init:
            a(f"v_max3_f32 {V(dst)}, {V(b)}, {V(b+1)}, {V(b+2)}")
            for i in range(3, 15, 2): a(f"v_max3_f32 {V(dst)}, {V(dst)}, {V(b+i)}, {V(b+i+1)}")
            a(f"v_max_f32 {V(dst)}, {V(dst)}, {V(b+15)}")
        else:
            for i in range(0, 16, 2): a(f"v_max3_f32 {V(dst)}, {V(dst)}, {V(b+i)}, {V(b+i+1)}")
    def setm(q):
        m = mx + q
        a(f"v_mov_b32 {V(t)}, {V(m)}\nv_permlane32_swap_b32 {V(m)}, {V(t)}\nv_max_f32 {V(m)}, {V(m)}, {V(t)}")
        a(f"v_sub_f32 {V(m)}, 0, {V(m)}")
        a(f"v_and_b32 {V(t)}, 0xffff0000, {V(m)}\nv_sub_f32 {V(m)}, {V(m)}, {V(t)}")
        a(f"v_and_b32 {V(t+1)}, 0xffff0000, {V(m)}\nv_sub_f32 {V(m)}, {V(m)}, {V(t+1)}")
        a(f"v_lshrrev_b32 {V(t)}, 16, {V(t)}\nv_or_b32 {V(t)}, {V(t)}, {V(t+1)}\nv_and_b32 {V(Qt+4*q+1)}, {V(t)}, {V(msk)}")
        a(f"v_lshrrev_b32 {V(m)}, 16, {V(m)}\nv_and_b32 {V(Qt+4*q+2)}, {V(m)}, {V(msk)}")
    for q in range(NQ):
        for m in smfma(q, q): a(m)
    for q in range(NQ):
        rowmax(q, mx+q, True); setm(q)
    for m in smfma(0, 0): a(m)
    a("s_nop 7")
    a(f"s_mov_b32 {S(sCnt)}, 0")
    L = a.label("ATT")
    a(f".p2align 4\n{L}:")
    post = {(u, p): [] for u in range(16) for p in range(4)}
    for tl in range(8):
        nt = (tl + 1) % 8; ev = 2*tl; od = ev + 1
        post[ev, 0].append(f"ds_read_b128 {V(Km,4)}, {V(vK)} offset:{nt*1024}")
        post[ev, 1].append(f"ds_read_b32 {V(Kt)}, {V(vKt)} offset:{nt*128}")
        post[ev, 2] += ["s_waitcnt lgkmcnt(2)", f"ds_read_b128 {V(V1,4)}, {V(vV)} offset:{tl*1280 + 640}"]
        post[ev, 3].append("s_waitcnt lgkmcnt(1)")
        post[od, 1].append("s_waitcnt lgkmcnt(0)")
        post[od, 3].append(f"ds_read_b128 {V(V0,4)}, {V(vV)} offset:{nt*1280}")
    free = [(u, p) for u in range(1, 16, 2) for p in (0, 2)]
    seq = [[f"s_cmp_ge_u32 {S(sCnt)}, 6"], [f"s_cselect_b32 {S(sSrc)}, {OOB}, {S(sSrc)}"],
           [f"s_add_u32 m0, {S(sDb)}, {S(sM0)}"], [f"s_add_u32 {S(sT0)}, {S(sSrc)}, 4096", dma_piece(0)], [dma_piece(1)], [dma_piece(2)], [dma_piece(3)],
           [f"s_add_u32 m0, m0, 4096"], [f"s_add_u32 {S(sSrc)}, {S(sSrc)}, {KVCH}", dma_piece(4)],
           wrap(sDb)[:1], wrap(sDb)[1:], wrap(sKb)[:1], wrap(sKb)[1:],
           ["s_waitcnt vmcnt(5)", "s_barrier"], [f"s_add_u32 {S(sCnt)}, {S(sCnt)}, 1"], [f"s_cmp_lt_u32 {S(sCnt)}, 8"]]
    assert len(seq) == len(free) and free[13] == (13, 2)
    for k, x in zip(free, seq): post[k] += x
    post[13, 3] += [f"v_add_u32 {V(vK)}, {S(sKb)}, {V(vL)}", f"v_add_u32 {V(vKt)}, {S(sKb)}, {V(vK0t)}"]
    post[15, 1] += [f"v_add_u32 {V(vV)}, {S(sKb)}, {V(vV0)}"]
    for u in range(16):
        tl, q = divmod(u, 2)
        b = Sb + 16*(u % 2)
        e = lambda i: f"v_exp_f32 {V(b+i)}, {V(b+i)}"
        c = lambda i: f"v_cvt_pk_bf16_f32 {V(P+i)}, {V(b+2*i)}, {V(b+2*i+1)}"
        g = [[e(0), e(1), e(2), c(0), e(3), e(4)], [c(1), e(5), e(6), c(2), e(7), e(8)],
             [c(3), e(9), e(10), c(4), e(11), e(12)], [c(5), e(13), e(14), e(15), c(6), c(7)]]
        s0, s1 = smfma((u+1) % 2, (q+1) % 2)
        ms = [s0, s1, mfma(O+16*((q+1) % 2), V1, P+4), mfma(O+16*q, V0, P)]
        for p in range(4):
            a(ms[p])
            for x in post[u, p]: a(x)
            for x in g[p]: a(x)
    a(f"s_cbranch_scc1 {L}")
    a(mfma(O+16, V1, P+4))
    stamp(a, 5)
    Lfin = a.label("ATTFIN"); Lfb = a.label("ATTFB")
    a("s_waitcnt vmcnt(0) lgkmcnt(0)")
    a(f"s_mov_b32 {S(sT0)}, {f32(2.0**40)}")
    a(f"v_cmp_nge_f32 vcc, {S(sT0)}, {V(O+10)}\nv_cmp_nge_f32 {S(40,2)}, {S(sT0)}, {V(O+26)}")
    a(f"s_nop 1\ns_or_b64 vcc, vcc, {S(40,2)}\ns_nop 4\ns_cbranch_vccnz {Lfb}")
    a(f"{Lfin}:")
    a(f"s_mov_b32 {S(sT0)}, {WS_FL+FG_G*256}\nv_mov_b32 {V(t)}, 0")
    poll(a, sWS, t, S(sT0), t+1, sT1)
    a(f"s_lshl_b32 {S(sT0)}, {S(sTb)}, 8\ns_add_u32 {S(sT0)}, {S(sT0)}, {WS_G}\nv_lshlrev_b32 {V(t)}, 3, {V(l31)}")
    for q in range(NQ): a(f"buffer_load_dword {V(gq+q)}, {V(t)}, {S(sWS,4)}, {S(sT0)} offen offset:{q*256}{SC()}")
    a(f"s_lshr_b32 {S(sT0)}, {S(sHead)}, 3\ns_mul_i32 {S(sT0)}, {S(sT0)}, 9\ns_mul_i32 {S(sT1)}, {S(sTb)}, 36\ns_add_u32 {S(sT0)}, {S(sT0)}, {S(sT1)}")
    a(f"s_add_u32 {S(sT1)}, {S(sT0)}, 8\ns_and_b32 {S(sT2)}, {S(sHead)}, 7\ns_add_u32 {S(sT0)}, {S(sT0)}, {S(sT2)}")
    a(f"s_lshl_b32 {S(sT0)}, {S(sT0)}, 10\ns_add_u32 {S(sT0)}, {S(sT0)}, {WS_OF}\ns_lshl_b32 {S(sT1)}, {S(sT1)}, 10\ns_add_u32 {S(sT1)}, {S(sT1)}, {WS_OF}")
    a(f"s_bfe_u32 {S(sT2)}, {S(sHead)}, 0x10002\ns_lshl_b32 {S(sT2)}, {S(sT2)}, 9\ns_add_u32 {S(sT1)}, {S(sT1)}, {S(sT2)}")
    a(f"s_and_b32 {S(sT2)}, {S(sHead)}, 3\ns_lshl_b32 {S(sT2)}, {S(sT2)}, 2\ns_add_u32 {S(sT1)}, {S(sT1)}, {S(sT2)}")
    a(f"v_cmp_gt_u32 vcc, 32, {V(lane)}\nv_mov_b32 {V(t)}, {OOB}\nv_cndmask_b32 {V(t+1)}, {V(t)}, {V(vL)}, vcc")
    a("s_waitcnt vmcnt(0)")
    for q in range(NQ):
        o = O + 16*q
        a(f"v_rcp_f32 {V(t)}, {V(o+10)}\nv_mul_f32 {V(t)}, {V(t)}, {V(gq+q)}")
        for i in range(10): a(f"v_mul_f32 {V(o+i)}, {V(o+i)}, {V(t)}")
        for i in range(4): a(f"v_cvt_pk_bf16_f32 {V(o+12+i)}, {V(o+2*i)}, {V(o+2*i+1)}")
        a(f"v_cvt_pk_bf16_f32 {V(o+11)}, {V(o+8)}, {V(o+9)}")
        a(f"buffer_store_dwordx4 {V(o+12,4)}, {V(vL)}, {S(sWS,4)}, {S(sT0)} offen{SC()}")
        a(f"buffer_store_dword {V(o+11)}, {V(t+1)}, {S(sWS,4)}, {S(sT1)} offen{SC()}")
        if q + 1 < NQ: a(f"s_add_u32 {S(sT0)}, {S(sT0)}, {36*1024}\ns_add_u32 {S(sT1)}, {S(sT1)}, {36*1024}")
    a(f"s_lshl_b32 {S(sT0)}, {S(sQg)}, 2\ns_lshr_b32 {S(sT1)}, {S(sHead)}, 3\ns_add_u32 {S(sT0)}, {S(sT0)}, {S(sT1)}\ns_lshl_b32 {S(sT0)}, {S(sT0)}, 8\ns_add_u32 {S(sT0)}, {S(sT0)}, {WS_FL+FO_G*256}")
    signal(a, sWS, S(sT0), 8)
    prof_end(a, kidx)
    a("s_endpgm")
    a(f"{Lfb}:")
    def tile_off():
        a(f"s_lshr_b32 {S(sT0)}, {S(sCnt)}, 3\ns_mul_i32 {S(sT0)}, {S(sT0)}, {KVCH}\ns_add_u32 {S(sT0)}, {S(sT0)}, {S(sKV)}\ns_and_b32 {S(sT2)}, {S(sCnt)}, 7")
        a(f"s_lshl_b32 {S(sT1)}, {S(sT2)}, 10\ns_add_u32 {S(sT1)}, {S(sT1)}, {S(sT0)}")
        a(f"buffer_load_dwordx4 {V(Km,4)}, {V(vL)}, {S(sWS,4)}, {S(sT1)} offen{SC()}")
        a(f"s_lshl_b32 {S(sT1)}, {S(sT2)}, 7\ns_add_u32 {S(sT1)}, {S(sT1)}, {S(sT0)}")
        a(f"buffer_load_dword {V(Kt)}, {V(vK0t)}, {S(sWS,4)}, {S(sT1)} offen{SC()}")
    for q in range(NQ):
        a(f"v_mov_b32 {V(Qt+4*q+1)}, 0\nv_mov_b32 {V(Qt+4*q+2)}, 0\nv_mov_b32 {V(mx+q)}, 0xff800000")
    for i in range(16*NQ): a(f"v_mov_b32 {V(O+i)}, 0")
    a(f"s_mov_b32 {S(sCnt)}, 0")
    L1 = a.label("ATTF1"); L2 = a.label("ATTF2")
    a(f"{L1}:")
    tile_off()
    a("s_waitcnt vmcnt(0)")
    for q in range(NQ):
        for m in smfma(q, q): a(m)
    for q in range(NQ): rowmax(q, mx+q, False)
    a(f"s_add_u32 {S(sCnt)}, {S(sCnt)}, 1\ns_cmp_lt_u32 {S(sCnt)}, 64\ns_cbranch_scc1 {L1}")
    for q in range(NQ): setm(q)
    a(f"s_mov_b32 {S(sCnt)}, 0")
    a(f"{L2}:")
    tile_off()
    a(f"s_mul_i32 {S(sT1)}, {S(sT2)}, 1280\ns_add_u32 {S(sT1)}, {S(sT1)}, {S(sT0)}")
    a(f"buffer_load_dwordx4 {V(V0,4)}, {V(vV0)}, {S(sWS,4)}, {S(sT1)} offen{SC()}")
    a(f"buffer_load_dwordx4 {V(V1,4)}, {V(vV0)}, {S(sWS,4)}, {S(sT1)} offen offset:640{SC()}")
    a("s_waitcnt vmcnt(0)")
    for q in range(NQ):
        for m in smfma(q, q): a(m)
    for q in range(NQ):
        b = Sb + 16*q
        for i in range(16): a(f"v_exp_f32 {V(b+i)}, {V(b+i)}")
        for i in range(8): a(f"v_cvt_pk_bf16_f32 {V(P+i)}, {V(b+2*i)}, {V(b+2*i+1)}")
        a(mfma(O+16*q, V0, P)); a(mfma(O+16*q, V1, P+4))
    a(f"s_add_u32 {S(sCnt)}, {S(sCnt)}, 1\ns_cmp_lt_u32 {S(sCnt)}, 64\ns_cbranch_scc1 {L2}")
    a(f"s_nop 15\ns_branch {Lfin}")
```

```python
from common import *
import copy
WS_FL = WS_T
FQ_G, FU_G, FO_G, FG_G = 0, 4, 28, 60
LDS_BYTES = 81920
vLane, vH, vL31, vL, vT = 1, 2, 3, 4, 5
V0FREE = 9
sDBG, sWS, sWave = 12, 16, 20
MODE = dict(mega=True)
def SC(): return " sc1" if MODE["mega"] else ""

def NT(n): return " nt" if CFG.get("nt_" + n) else ""
def entry(a):
    stamp(a, 0)
    a("s_load_dwordx16 s[64:79], s[0:1], 0\ns_load_dwordx8 s[80:87], s[0:1], 64")
    a(f"v_and_b32 {V(vLane)}, 63, v0\nv_lshrrev_b32 {V(vT)}, 6, v0\nv_readfirstlane_b32 {S(sWave)}, {V(vT)}")
    a(f"v_lshrrev_b32 {V(vH)}, 5, {V(vLane)}\nv_and_b32 {V(vL31)}, 31, {V(vLane)}\nv_lshlrev_b32 {V(vL)}, 4, {V(vLane)}")
def srd(a, d, name):
    p = 64 + KA[name] // 4
    a(f"s_mov_b32 {S(d)}, {S(p)}\ns_and_b32 {S(d+1)}, {S(p+1)}, 0xffff\ns_mov_b32 {S(d+2)}, {NB[name]}\ns_mov_b32 {S(d+3)}, 0x20000")
def entry_fin(a):
    srd(a, sWS, "ws"); srd(a, sDBG, "dbg")

def poll(a, srd, voff, soff, vtmp, sc, off=128):
    if not MODE["mega"]: return
    L = a.label("POLL"); Ld = a.label("POLLD")
    a(f"s_mov_b32 {S(sc)}, 0x20000")
    a(f"{L}:")
    a(f"buffer_load_dword {V(vtmp)}, {V(voff)}, {S(srd,4)}, {soff} offen offset:{off} sc1")
    a(f"s_waitcnt vmcnt(0)")
    a(f"v_cmp_ne_u32 vcc, 1, {V(vtmp)}")
    a(f"s_nop 4\ns_cbranch_vccz {Ld}")
    a(f"s_sleep 2\ns_sub_u32 {S(sc)}, {S(sc)}, 1\ns_cmp_lg_u32 {S(sc)}, 0\ns_cbranch_scc1 {L}")
    a(f"{Ld}:")
def poll_f0(a, sc, both=False):
    both = False
    if not MODE["mega"]: return
    L = a.label("PF0")
    a(f"s_cmp_lg_u32 {S(sWave)}, 0\ns_cbranch_scc1 {L}")
    if both: a(f"v_and_b32 {V(vT)}, 1, {V(vLane)}\nv_lshlrev_b32 {V(vT)}, 2, {V(vT)}")
    else: a(f"v_mov_b32 {V(vT)}, 0")
    poll(a, sDBG, vT, "0", vT+1, sc)
    a(f"{L}:")
def signal(a, srd, soff, n, nyoung=0, stmp=43):
    if not MODE["mega"]: return
    L = a.label("SIG"); L2 = a.label("SIGR")
    a(f"s_waitcnt vmcnt({nyoung})\ns_barrier\ns_cmp_lg_u32 {S(sWave)}, 0\ns_cbranch_scc1 {L}")
    a(f"v_mov_b32 {V(vT)}, 0\nv_mov_b32 {V(vT+1)}, 1\nv_mov_b32 {V(vT+2)}, 1\ns_mov_b64 exec, 1")
    a(f"buffer_atomic_add {V(vT+1)}, {V(vT)}, {S(srd,4)}, {soff} offen sc0 sc1\ns_waitcnt vmcnt(0)")
    a(f"v_readfirstlane_b32 {S(stmp)}, {V(vT+1)}\ns_cmp_lg_u32 {S(stmp)}, {n-1}\ns_cbranch_scc1 {L2}")
    a(f"buffer_store_dword {V(vT+2)}, {V(vT)}, {S(srd,4)}, {soff} offen offset:128 sc1")
    a(f"{L2}:\ns_mov_b64 exec, -1")
    a(f"{L}:")
```

```python
from m_common import *
G1SLOT = 14336
def g1_alloc(va, R):
    R.update(vWs=va.alloc(2), vWr=va.alloc(), vXr=va.alloc(), vX2=va.alloc(), bias=va.alloc(8, 2))
def g1_setup(a, va, R):
    sFt, sDt, sXoff, sWoff, sWm0, sXm0, sCnt, sT0, sT1, sT2 = range(24, 34)
    R.update(sFt=sFt, sDt=sDt, sXoff=sXoff, sWoff=sWoff, sWm0=sWm0, sXm0=sXm0, sCnt=sCnt, sT0=sT0, sT1=sT1, sT2=sT2)
    t = vT; lane, hh = vLane, vH
    a(f"s_and_b32 {S(sT0)}, s2, 7\ns_mul_i32 {S(sT0)}, {S(sT0)}, 27\ns_lshr_b32 {S(sT1)}, s2, 3\ns_add_u32 {S(sT0)}, {S(sT0)}, {S(sT1)}")
    a(f"s_mul_i32 {S(sFt)}, {S(sT0)}, 171\ns_lshr_b32 {S(sFt)}, {S(sFt)}, 10\ns_mul_i32 {S(sT1)}, {S(sFt)}, 6\ns_sub_u32 {S(sDt)}, {S(sT0)}, {S(sT1)}")
    a(f"s_lshl_b32 {S(sXm0)}, {S(sWave)}, 10\ns_mul_i32 {S(sXoff)}, {S(sDt)}, 393216\ns_add_u32 {S(sXoff)}, {S(sXoff)}, {S(sXm0)}")
    if WS_HT: a(f"s_add_u32 {S(sXoff)}, {S(sXoff)}, {WS_HT}")
    a(f"s_add_u32 {S(sXm0)}, {S(sXm0)}, 8192\ns_lshl_b32 {S(sWm0)}, {S(sWave)}, 11")
    a(f"s_mul_i32 {S(sWoff)}, {S(sWave)}, {8*9216}\ns_lshl_b32 {S(sT0)}, {S(sFt)}, 8\ns_add_u32 {S(sWoff)}, {S(sWoff)}, {S(sT0)}")
    a(f"s_mov_b32 s40, {S(sWoff)}\ns_mov_b32 s41, {S(sXoff)}")
    if CFG["rot1"] == 2: a(f"s_and_b32 s38, s2, 7\ns_lshl_b32 s38, s38, 3")
    elif CFG["rot1"]: a(f"s_mul_i32 s38, {S(sDt)}, 43\ns_lshr_b32 s38, s38, 2")
    else: a("s_mov_b32 s38, 0")
    if CFG["win1"]:
        a(f"s_mul_i32 {S(sT0)}, {S(sFt)}, 52\ns_lshr_b32 {S(sT0)}, {S(sT0)}, 8\ns_mul_i32 {S(sT0)}, {S(sT0)}, 5\ns_sub_u32 s39, {S(sFt)}, {S(sT0)}\ns_lshl_b32 s39, s39, 1")
        for x in range(36): assert (x*52) >> 8 == x // 5
        if CFG["win1"] == 2:
            a(f"s_mul_i32 {S(sT0)}, {S(sDt)}, 27\ns_lshr_b32 {S(sT0)}, {S(sT0)}, 4\ns_add_u32 s39, s39, {S(sT0)}\ns_sub_u32 {S(sT0)}, s39, 10\ns_cmp_ge_u32 s39, 10\ns_cselect_b32 s39, {S(sT0)}, s39")
    else: a("s_mov_b32 s39, 0")
    vWs, vWr, vXr, vX2 = R["vWs"], R["vWr"], R["vXr"], R["vX2"]
    a(f"v_lshrrev_b32 {V(t)}, 4, {V(lane)}\nv_lshlrev_b32 {V(t+1)}, 2, {V(t)}\nv_and_b32 {V(t+2)}, 15, {V(lane)}\nv_xor_b32 {V(t+1)}, {V(t+1)}, {V(t+2)}")
    a(f"v_mul_u32_u24 {V(t)}, 9216, {V(t)}\nv_lshl_add_u32 {V(vWs)}, {V(t+1)}, 4, {V(t)}\nv_add_u32 {V(vWs+1)}, {4*9216}, {V(vWs)}")
    a(f"v_bfe_u32 {V(t)}, {V(lane)}, 2, 2\nv_lshl_add_u32 {V(t+1)}, {V(hh)}, 3, {V(t)}\nv_lshlrev_b32 {V(t+1)}, 8, {V(t+1)}")
    a(f"v_bfe_u32 {V(t+2)}, {V(lane)}, 4, 1\nv_lshl_add_u32 {V(t+1)}, {V(t+2)}, 5, {V(t+1)}")
    a(f"v_and_b32 {V(t+2)}, 3, {V(lane)}\nv_lshl_add_u32 {V(t+1)}, {V(t+2)}, 3, {V(t+1)}")
    a(f"v_xor_b32 {V(t)}, {S(sWave)}, {V(t)}\nv_lshl_add_u32 {V(vWr)}, {V(t)}, 6, {V(t+1)}")
    a(f"v_add_u32 {V(vXr)}, 8192, {V(vL)}\nv_add_u32 {V(vX2)}, 4096, {V(vL)}")

def g1_idx(R, st, advance=True):
    if st < 4: return f"s_add_u32 s42, s38, {st}\ns_and_b32 s42, s42, 63"
    o = "s_add_u32 s42, s38, s39\ns_add_u32 s42, s42, 4\ns_and_b32 s42, s42, 63"
    if advance:
        o += "\ns_add_u32 s39, s39, 1\ns_cmp_eq_u32 s39, 10\ns_cselect_b32 s39, 0, s39"
        if (st - 4) % 10 == 9: o += "\ns_add_u32 s38, s38, 10"
    return o
def g1_dma_w(R, st, vm):
    slot = st % 5
    vm.issue(f"W{st}", 2)
    nt = " nt" if st < CFG["nt_w1"] else ""
    return [f"s_mul_i32 {S(R['sWoff'])}, s42, {32*9216}\ns_add_u32 m0, {S(R['sWm0'])}, {slot*G1SLOT}\ns_add_u32 {S(R['sWoff'])}, {S(R['sWoff'])}, s40\nbuffer_load_dwordx4 {V(R['vWs'])}, s[4:7], {S(R['sWoff'])} offen{nt} lds",
            f"s_add_u32 m0, {S(R['sWm0'])}, {slot*G1SLOT+1024}\ns_nop 0\nbuffer_load_dwordx4 {V(R['vWs']+1)}, s[4:7], {S(R['sWoff'])} offen{nt} lds"]
def g1_dma_x(a, R, st, vm):
    slot = st % 5; L = a.label("G1S")
    vm.issue(f"X{st}", 1)
    return [f"s_mul_i32 {S(R['sXoff'])}, s42, 6144\ns_add_u32 {S(R['sXoff'])}, {S(R['sXoff'])}, s41\ns_add_u32 m0, {S(R['sXm0'])}, {slot*G1SLOT+4096}\ns_cmp_ge_u32 {S(sWave)}, 2\ns_cbranch_scc1 {L}\nbuffer_load_dwordx4 {V(R['vX2'])}, {S(sWS,4)}, {S(R['sXoff'])} offen{SC()} lds\n{L}:",
            f"s_add_u32 m0, {S(R['sXm0'])}, {slot*G1SLOT}\ns_nop 0\nbuffer_load_dwordx4 {V(vL)}, {S(sWS,4)}, {S(R['sXoff'])} offen{SC()} lds"]

def g1_prologue_w(a, R, vm):
    sT0, sT1 = R["sT0"], R["sT1"]
    a(f"s_lshl_b32 {S(sT0)}, {S(R['sFt'])}, 8\ns_lshl_b32 {S(sT1)}, {S(sWave)}, 6\ns_add_u32 {S(sT0)}, {S(sT0)}, {S(sT1)}\nv_lshlrev_b32 {V(vT)}, 3, {V(vH)}")
    for g in range(4): a(f"buffer_load_dwordx2 {V(R['bias']+2*g,2)}, {V(vT)}, s[8:11], {S(sT0)} offen offset:{16*g}")
    vm.issue("bias", 4)
    for st in range(5):
        a(g1_idx(R, st, False))
        for x in g1_dma_w(R, st, vm): a(x)

def g1_main(a, va, R, vm):
    sT0, sT1, sCnt, bias = R["sT0"], R["sT1"], R["sCnt"], R["bias"]
    acc = va.alloc(48, 4); bf = va.alloc(16, 4); fr = va.alloc(64, 4)
    for st in range(5):
        a(g1_idx(R, st))
        for x in g1_dma_x(a, R, st, vm): a(x)
    def Wf(st, ks): return fr + 32*(st % 2) + 16*ks
    def Xf(st, ks, b): return fr + 32*(st % 2) + 16*ks + 4 + 4*b
    def reads(st):
        o = []; sl = (st % 5)*G1SLOT
        for ks in range(2):
            o.append(f"ds_read_b64_tr_b16 {V(Wf(st,ks),2)}, {V(R['vWr'])} offset:{sl + ks*4096}")
            o.append(f"ds_read_b64_tr_b16 {V(Wf(st,ks)+2,2)}, {V(R['vWr'])} offset:{sl + ks*4096 + 1024}")
            for b in range(3): o.append(f"ds_read_b128 {V(Xf(st,ks,b),4)}, {V(R['vXr'])} offset:{sl + (3*ks+b)*1024}")
        return o
    a(f"s_waitcnt vmcnt({vm.wait('X0')})\ns_barrier")
    stamp(a, 3)
    for x in reads(0): a(x)
    for g in range(4):
        for i in range(2):
            a(f"v_lshlrev_b32 {V(bf+4*g+2*i)}, 16, {V(bias+2*g+i)}\nv_and_b32 {V(bf+4*g+2*i+1)}, 0xffff0000, {V(bias+2*g+i)}")
    a(f"s_setprio {CFG['prio_g1']}")
    NST = 64
    def stage(st):
        ms = [mfma(acc+16*b, Wf(st,ks), Xf(st,ks,b), V(bf,16) if (st == 0 and ks == 0) else None) for ks in range(2) for b in range(3)]
        rd = []; dm = []
        a("s_waitcnt lgkmcnt(0)")
        a(ms[0])
        if st + 5 < NST: a(g1_idx(R, st+5))
        if st + 1 < NST:
            a(f"s_waitcnt vmcnt({vm.wait(f'X{st+1}')})\ns_barrier")
            rd = reads(st+1)
            if st + 5 < NST: dm = g1_dma_w(R, st+5, vm) + g1_dma_x(a, R, st+5, vm)
        a(ms[1])
        for x in rd[:5]: a(x)
        a(ms[2])
        for x in rd[5:]: a(x)
        a(ms[3])
        for x in dm[:2]: a(x)
        a(ms[4])
        for x in dm[2:3]: a(x)
        a(ms[5])
        for x in dm[3:]: a(x)
    HEAD = 14 if CFG["nt_w1"] > 9 else 4
    assert CFG["nt_w1"] <= HEAD + 5
    for st in range(HEAD): stage(st)
    L = a.label("G1L")
    a(f"s_mov_b32 {S(sCnt)}, {(54-HEAD)//10}\n.p2align 4\n{L}:")
    q0 = list(vm.q)
    for st in range(HEAD, HEAD+10): stage(st)
    assert [t[0] + str(int(t[1:]) - 10) for t in vm.q] == q0, (vm.q, q0)
    if PROF["on"]: a(f"s_memtime s[100:101]\ns_add_u32 s96, {S(sCnt)}, 10\ns_waitcnt lgkmcnt(0)\ns_mov_b32 m0, s96\ns_nop 3\nv_writelane_b32 v255, s100, m0")
    a(f"s_sub_u32 {S(sCnt)}, {S(sCnt)}, 1\ns_cmp_lg_u32 {S(sCnt)}, 0\ns_cbranch_scc1 {L}")
    vm.q = [t[0] + str(int(t[1:]) + 54 - HEAD) for t in q0]
    for st in range(54, 64): stage(st)
    a("s_setprio 3")
    stamp(a, 4)
    R["acc"] = acc; R["fr"] = fr

def g1_epilogue(a, va, R, vm):
    sT0, sT1, acc = R["sT0"], R["sT1"], R["acc"]
    tmp = R["fr"]; pk = tmp + 16; cc = tmp + 24
    c0 = -2.0 * math.sqrt(2.0 / math.pi) * math.log2(math.e)
    a(f"s_mov_b32 s60, {f32(c0*0.044715)}\ns_mov_b32 s61, s60\ns_mov_b32 s62, 1.0\ns_mov_b32 s63, 1.0\nv_mov_b32 {V(cc)}, {f32(c0)}\nv_mov_b32 {V(cc+1)}, {f32(c0)}")
    a(f"s_mul_i32 {S(sT0)}, {S(R['sDt'])}, 288\ns_lshl_b32 {S(sT1)}, {S(R['sFt'])}, 3\ns_add_u32 {S(sT0)}, {S(sT0)}, {S(sT1)}\ns_lshl_b32 {S(sT1)}, {S(sWave)}, 1")
    a(f"s_add_u32 {S(sT0)}, {S(sT0)}, {S(sT1)}\ns_mul_i32 {S(sT0)}, {S(sT0)}, 3072\ns_add_u32 {S(sT0)}, {S(sT0)}, {WS_U}\ns_add_u32 {S(sT1)}, {S(sT0)}, 3072")
    for xb in range(3):
        x = acc + 16*xb
        for i in range(0, 16, 2): a(f"v_pk_mul_f32 {V(tmp+i,2)}, {V(x+i,2)}, {V(x+i,2)}")
        for i in range(0, 16, 2): a(f"v_pk_fma_f32 {V(tmp+i,2)}, {V(tmp+i,2)}, s[60:61], {V(cc,2)}")
        for i in range(0, 16, 2): a(f"v_pk_mul_f32 {V(tmp+i,2)}, {V(tmp+i,2)}, {V(x+i,2)}")
        for i in range(16): a(f"v_exp_f32 {V(tmp+i)}, {V(tmp+i)}")
        for i in range(0, 16, 2): a(f"v_pk_add_f32 {V(tmp+i,2)}, {V(tmp+i,2)}, s[62:63]")
        for i in range(16): a(f"v_rcp_f32 {V(tmp+i)}, {V(tmp+i)}")
        for i in range(0, 16, 2): a(f"v_pk_mul_f32 {V(x+i,2)}, {V(x+i,2)}, {V(tmp+i,2)}")
        for hf in range(2):
            for i in range(4): a(f"v_cvt_pk_bf16_f32 {V(pk+4*hf+i)}, {V(x+8*hf+2*i)}, {V(x+8*hf+2*i+1)}")
            a(f"buffer_store_dwordx4 {V(pk+4*hf,4)}, {V(vL)}, {S(sWS,4)}, {S(sT1 if hf else sT0)} offen offset:{xb*1024}{SC()}"); vm.issue("ust")
    a(f"s_mul_i32 {S(sT0)}, {S(R['sFt'])}, 57\ns_lshr_b32 {S(sT0)}, {S(sT0)}, 9\ns_lshl_b32 s34, {S(R['sDt'])}, 2\ns_add_u32 s34, s34, {S(sT0)}\ns_lshl_b32 s34, s34, 8\ns_add_u32 s34, s34, {WS_FL + FU_G*256}")
    for x in range(36): assert (x*57) >> 9 == x // 9
```

```python
from m_common import *
from pgemm import reduce4_96x64
G2R = 20480
N2 = 4
def g2_setup(a, va, R, vm):
    sSt, sDt, sXoff, sWoff, sM0, sCnt, sT0, sT1, sT2, sOoff, sO1, sWo = list(range(21, 30)) + [35, 36, 37]
    R.update(sSt=sSt, sDt=sDt, sXoff=sXoff, sWoff=sWoff, sM0=sM0, sCnt=sCnt, sT0=sT0, sT1=sT1, sT2=sT2, sOoff=sOoff, sO1=sO1, sWo=sWo)
    t = vT; lane, hh, l31 = vLane, vH, vL31
    a(f"s_lshr_b32 {S(sT0)}, s2, 3\ns_mul_i32 {S(sT1)}, {S(sT0)}, 43\ns_lshr_b32 {S(sT1)}, {S(sT1)}, 8")
    a(f"s_mul_i32 {S(sT2)}, {S(sT1)}, 6\ns_sub_u32 {S(sDt)}, {S(sT0)}, {S(sT2)}")
    a(f"s_and_b32 {S(sSt)}, s2, 7\ns_lshl_b32 {S(sSt)}, {S(sSt)}, 2\ns_add_u32 {S(sSt)}, {S(sSt)}, {S(sT1)}")
    a(f"s_lshl_b32 {S(sT0)}, {S(sDt)}, 2\ns_add_u32 {S(sT0)}, {S(sT0)}, {S(sWave)}\ns_mul_i32 {S(sXoff)}, {S(sT0)}, {72*3072}\ns_add_u32 {S(sXoff)}, {S(sXoff)}, {WS_U}")
    a(f"s_mul_i32 {S(sWoff)}, {S(sWave)}, {1152*4096}\ns_lshl_b32 {S(sT0)}, {S(sSt)}, 7\ns_add_u32 {S(sWoff)}, {S(sWoff)}, {S(sT0)}")
    a(f"s_mul_i32 {S(sM0)}, {S(sWave)}, {G2R}")
    a(f"s_mov_b32 s40, {S(sWoff)}\ns_mov_b32 s41, {S(sXoff)}")
    a(f"s_mul_i32 s38, {S(sDt)}, {12 if CFG['rot2'] else 0}\ns_and_b32 s39, {S(sSt)}, 3\ns_mul_i32 s39, s39, {3 if CFG['win2'] else 0}")
    if CFG["rot2"] == 2: a(f"s_and_b32 s38, s2, 7\ns_mul_i32 s38, s38, 3\ns_lshr_b32 s38, s38, 2\ns_mul_i32 s38, s38, 12")
    if CFG["win2"] == 2:
        a(f"s_lshl_b32 {S(sT0)}, {S(sDt)}, 1\ns_add_u32 s39, s39, {S(sT0)}\ns_sub_u32 {S(sT0)}, s39, 12\ns_cmp_ge_u32 s39, 12\ns_cselect_b32 s39, {S(sT0)}, s39")
    a("s_mov_b32 s52, s38\ns_mov_b32 s53, s39")
    vX = va.alloc(); vWs = va.alloc(); vWr = va.alloc(2)
    R.update(vX=vX, vWs=vWs, vWr=vWr)
    a(f"v_lshrrev_b32 {V(t)}, 3, {V(lane)}\nv_bfe_u32 {V(t+1)}, {V(lane)}, 4, 1\nv_lshlrev_b32 {V(t+1)}, 2, {V(t+1)}\nv_and_b32 {V(t+2)}, 7, {V(lane)}\nv_xor_b32 {V(t+1)}, {V(t+1)}, {V(t+2)}")
    a(f"v_lshlrev_b32 {V(t)}, 12, {V(t)}\nv_lshl_add_u32 {V(vWs)}, {V(t+1)}, 4, {V(t)}")
    for k in range(N2):
        for i in range(2): a(g2_dma_w(R, k, i, vm))
    a(f"s_lshr_b32 {S(sT0)}, {S(sWave)}, 1\ns_lshl_b32 {S(sT0)}, {S(sT0)}, 8\nv_xor_b32 {V(vX)}, {S(sT0)}, {V(vL)}")
    a(f"v_bfe_u32 {V(t)}, {V(lane)}, 2, 2\nv_lshl_add_u32 {V(t+1)}, {V(hh)}, 2, {V(t)}\nv_lshlrev_b32 {V(t+1)}, 7, {V(t+1)}")
    a(f"v_bfe_u32 {V(t+2)}, {V(lane)}, 4, 1\nv_lshl_add_u32 {V(t+1)}, {V(t+2)}, 5, {V(t+1)}")
    a(f"v_and_b32 {V(t+2)}, 3, {V(lane)}\nv_lshl_add_u32 {V(t+1)}, {V(t+2)}, 3, {V(t+1)}\nv_add_u32 {V(t+1)}, {S(sM0)}, {V(t+1)}")
    a(f"s_and_b32 {S(sT0)}, {S(sWave)}, 1\nv_lshrrev_b32 {V(t)}, 1, {V(t)}\nv_xor_b32 {V(t)}, {S(sT0)}, {V(t)}")
    for b in range(2): a(f"v_xor_b32 {V(t+2)}, {b}, {V(t)}\nv_lshl_add_u32 {V(vWr+b)}, {V(t+2)}, 6, {V(t+1)}")

def g2_adv(k, win, pos):
    o = f"s_add_u32 s{pos}, s{pos}, 1\ns_cmp_eq_u32 s{pos}, 12\ns_cselect_b32 s{pos}, 0, s{pos}"
    if k % 12 == 11: o += f"\ns_add_u32 s{win}, s{win}, 12\ns_cmp_eq_u32 s{win}, 72\ns_cselect_b32 s{win}, 0, s{win}"
    return o
def g2_dma_w(R, k, i, vm):
    vm.issue(f"W{k}")
    w = S(R['sWoff'])
    ld = f"buffer_load_dwordx4 {V(R['vWs'])}, s[4:7], {w} offen lds"
    if i == 0: return f"s_add_u32 {w}, s38, s39\ns_lshl_b32 {w}, {w}, 16\ns_add_u32 m0, {S(R['sM0'])}, {(k % N2)*2048}\ns_add_u32 {w}, {w}, s40\n{ld}"
    return f"s_add_u32 m0, {S(R['sM0'])}, {(k % N2)*2048 + 1024}\ns_add_u32 {w}, {w}, {8*4096}\n{ld}\n" + g2_adv(k, 38, 39)

def g2_main(a, va, R, vm):
    sSt, sDt, sM0, sCnt, sT0, sT1, sT2, sOoff, sO1, sWo = [R[k] for k in "sSt sDt sM0 sCnt sT0 sT1 sT2 sOoff sO1 sWo".split()]
    t = vT; lane, hh, l31 = vLane, vH, vL31
    N = N2; NX = 6; NS = 72; TAIL = 8
    b2r = va.alloc(); gA = va.alloc(2, 2); gB = va.alloc(2, 2); vO = va.alloc(); vFl = va.alloc(); fl = va.alloc()
    vOs = va.alloc(3); vOt = va.alloc(3); vOr = va.alloc()
    accb = va.alloc(96, 4)
    mk = va.mark()
    xr = va.alloc(12*NX, 4); wf = va.alloc(16, 4); of_ = va.alloc(24, 4)
    def ofr(j): return of_ + 8*j if j < 3 else (xr + 8*(j-3) if j < 6 else xr + 48 + 8*(j-6))
    def accv(xb, wb): return accb + 16*(3*wb + xb)
    a(f"s_and_b32 {S(sT2)}, {S(sWave)}, 1\ns_lshl_b32 {S(sT1)}, {S(sSt)}, 6\ns_lshl_b32 {S(sT0)}, {S(sT2)}, 5\ns_add_u32 {S(sT0)}, {S(sT0)}, {S(sT1)}\nv_add_u32 {V(t)}, {S(sT0)}, {V(l31)}")
    a(f"v_lshlrev_b32 {V(t+1)}, 1, {V(t)}\nv_lshlrev_b32 {V(gA)}, 3, {V(t)}\nv_add_u32 {V(gA)}, {WS_G+4}, {V(gA)}\nv_xor_b32 {V(gB)}, 256, {V(gA)}")
    assert WS_G % 512 == 0
    a(f"buffer_load_ushort {V(b2r)}, {V(t+1)}, s[44:47], 0 offen"); vm.issue("g", 1)
    a(f"v_mul_u32_u24 {V(vO)}, 1152, {V(t)}\nv_lshl_add_u32 {V(vO)}, {V(hh)}, 4, {V(vO)}")
    a(f"s_lshl_b32 {S(sT0)}, {S(sSt)}, 1\ns_add_u32 {S(sT0)}, {S(sT0)}, {S(sT2)}\ns_mul_i32 {S(sT1)}, {S(sWave)}, {9*1024}\ns_add_u32 {S(sT1)}, {S(sT1)}, {WS_OF}")
    a(f"s_mul_i32 {S(sOoff)}, {S(sT0)}, {36*1024}\ns_add_u32 {S(sOoff)}, {S(sOoff)}, {S(sT1)}")
    a(f"s_xor_b32 {S(sT0)}, {S(sT0)}, 1\ns_mul_i32 {S(sO1)}, {S(sT0)}, {36*1024}\ns_add_u32 {S(sO1)}, {S(sO1)}, {S(sT1)}")
    a(f"s_mul_i32 {S(sWo)}, {S(sWave)}, {144*1152}\ns_mul_i32 {S(sT0)}, {S(sDt)}, 192\ns_add_u32 {S(sWo)}, {S(sWo)}, {S(sT0)}")
    for i in range(3):
        a(f"v_add_u32 {V(t)}, {64*i}, {V(lane)}\nv_mul_u32_u24 {V(t+1)}, 171, {V(t)}\nv_lshrrev_b32 {V(t+1)}, 11, {V(t+1)}")
        a(f"v_mul_u32_u24 {V(t+2)}, 12, {V(t+1)}\nv_sub_u32 {V(t+2)}, {V(t)}, {V(t+2)}\nv_lshlrev_b32 {V(t+2)}, 4, {V(t+2)}")
        a(f"v_mul_u32_u24 {V(t)}, 1152, {V(t+1)}\nv_add_u32 {V(vOs+i)}, {V(t)}, {V(t+2)}")
        a(f"v_bfe_u32 {V(t)}, {V(t+1)}, 2, 1\nv_lshlrev_b32 {V(t)}, 2, {V(t)}\nv_lshrrev_b32 {V(t+3)}, 3, {V(t+1)}\nv_lshl_add_u32 {V(t)}, {V(t+3)}, 1, {V(t)}")
        a(f"v_bfe_u32 {V(t+3)}, {V(t+1)}, 1, 1\nv_add_u32 {V(t)}, {V(t)}, {V(t+3)}\nv_mul_u32_u24 {V(t)}, 18, {V(t)}\nv_and_b32 {V(t+3)}, 1, {V(t+1)}")
        a(f"v_add3_u32 {V(t)}, {V(t)}, {V(t+3)}, 16\nv_mul_u32_u24 {V(t)}, 1152, {V(t)}\nv_add_u32 {V(vOt+i)}, {V(t)}, {V(t+2)}")
    a(f"s_lshr_b32 {S(sT0)}, {S(sWave)}, 1\nv_bfe_u32 {V(t+2)}, {V(lane)}, 4, 1\nv_xor_b32 {V(t+2)}, {S(sT0)}, {V(t+2)}\nv_lshlrev_b32 {V(t+1)}, 5, {V(t+2)}")
    a(f"v_and_b32 {V(t+2)}, 3, {V(lane)}\nv_lshl_add_u32 {V(t+1)}, {V(t+2)}, 3, {V(t+1)}\nv_add_u32 {V(t+1)}, {S(sM0)}, {V(t+1)}")
    a(f"v_bfe_u32 {V(t)}, {V(lane)}, 2, 2\nv_lshl_add_u32 {V(t+2)}, {V(hh)}, 2, {V(t)}\nv_mul_u32_u24 {V(t+2)}, 192, {V(t+2)}\nv_add_u32 {V(vOr)}, {V(t+2)}, {V(t+1)}")
    a(f"s_and_b32 {S(sT0)}, {S(sSt)}, 28\ns_add_u32 {S(sT0)}, {S(sT0)}, {S(sWave)}\ns_lshl_b32 {S(sT0)}, {S(sT0)}, 8\ns_add_u32 {S(sT0)}, {S(sT0)}, {WS_FL+FO_G*256}\nv_mov_b32 {V(vFl)}, {S(sT0)}")
    if MODE["mega"]:
        a(f"s_lshl_b32 {S(sT0)}, {S(sDt)}, 2\ns_add_u32 {S(sT0)}, {S(sT0)}, {S(sWave)}\ns_lshl_b32 {S(sT0)}, {S(sT0)}, 8\ns_add_u32 {S(sT0)}, {S(sT0)}, {WS_FL+FU_G*256}\nv_mov_b32 {V(t)}, 0")
        poll(a, sWS, t, S(sT0), t+1, sT1)
        vm.q = []
    stamp(a, 6)
    def issue_x(k):
        x = S(R['sXoff'])
        o = f"s_add_u32 {x}, s52, s53\ns_mul_i32 {x}, {x}, 3072\ns_add_u32 {x}, {x}, s41\n"
        for b in range(3): o += f"buffer_load_dwordx4 {V(xr + 12*(k % NX) + 4*b, 4)}, {V(R['vX'])}, {S(sWS,4)}, {x} offen offset:{b*1024}{SC()}\n"
        vm.issue(f"X{k}", 3)
        return o + g2_adv(k, 52, 53)
    def rd_w(k, b):
        d = wf + 8*(k % 2) + 4*b; off = (k % N)*2048
        return f"ds_read_b64_tr_b16 {V(d,2)}, {V(R['vWr']+b)} offset:{off}\nds_read_b64_tr_b16 {V(d+2,2)}, {V(R['vWr']+b)} offset:{off+1024}"
    wo_pos = [8192, 11264, 14336, 17408, 0, 3072, 8192, 11264, 14336]
    def wo_dma(j):
        o = ""
        if j == 8: o += f"s_sub_u32 {S(sWo)}, {S(sWo)}, {8*18*1152}\n"
        for i in range(3):
            o += f"s_add_u32 m0, {S(sM0)}, {wo_pos[j] + i*1024}\ns_nop 0\nbuffer_load_dwordx4 {V((vOs if j < 8 else vOt)+i)}, s[8:11], {S(sWo)} offen lds\n"
        vm.issue(f"P{j}", 3)
        return o + f"s_add_u32 {S(sWo)}, {S(sWo)}, {18*1152}"
    def o_load(j):
        vm.issue(f"O{j}", 2)
        o = f"buffer_load_dwordx4 {V(ofr(j),4)}, {V(vL)}, {S(sWS,4)}, {S(sOoff)} offen offset:{(j % 4)*1024}{SC()}\n"
        o += f"buffer_load_dwordx4 {V(ofr(j)+4,4)}, {V(vL)}, {S(sWS,4)}, {S(sO1)} offen offset:{(j % 4)*1024}{SC()}"
        if j % 4 == 3: o += f"\ns_add_u32 {S(sOoff)}, {S(sOoff)}, 4096\ns_add_u32 {S(sO1)}, {S(sO1)}, 4096"
        return o
    for k in range(NX-1): a(issue_x(k))
    a(f"s_waitcnt vmcnt({vm.wait('X0')})")
    for b in range(2): a(rd_w(0, b))
    a(f"s_setprio {CFG['prio_g2']}")
    def vwait(*tags):
        tags = [x for x in tags if x in vm.q]
        if not tags: return ""
        last = max(tags, key=lambda x: max(i for i, y in enumerate(vm.q) if y == x))
        return f"s_waitcnt vmcnt({vm.wait(last)})\n"
    def step(k, extra=()):
        per = [[] for _ in range(6)]
        if k + NX - 1 < NS: per[0].append(lambda: issue_x(k + NX - 1))
        if k + N < NS:
            for i in range(2): per[1].append(lambda i=i: g2_dma_w(R, k + N, i, vm))
        if k + 1 < NS:
            per[2].append(lambda: vwait(f"X{k+1}", f"W{k+1}") + rd_w(k + 1, 0) + "\n" + rd_w(k + 1, 1))
        for i, f in enumerate(extra): per[3 + i % 3].append(f)
        a("s_waitcnt lgkmcnt(0)")
        for m in range(6):
            wb, xb = divmod(m, 3)
            a(mfma(accv(xb, wb), xr + 12*(k % NX) + 4*xb, wf + 8*(k % 2) + 4*wb, "0" if k == 0 else None))
            for f in per[m]: a(f())
    HEAD, UN = 4, 12
    for k in range(HEAD): step(k)
    L = a.label("G2L")
    a(f"s_mov_b32 {S(sCnt)}, {(NS-HEAD-TAIL)//UN}\n.p2align 4\n{L}:")
    q0 = list(vm.q)
    for k in range(HEAD, HEAD+UN): step(k)
    assert [x[0] + str(int(x[1:]) - UN) for x in vm.q] == q0, (vm.q, q0)
    if PROF["on"]: a(f"s_memtime s[100:101]\ns_add_u32 s96, {S(sCnt)}, 20\ns_waitcnt lgkmcnt(0)\ns_mov_b32 m0, s96\ns_nop 3\nv_writelane_b32 v255, s100, m0")
    a(f"s_sub_u32 {S(sCnt)}, {S(sCnt)}, 1\ns_cmp_lg_u32 {S(sCnt)}, 0\ns_cbranch_scc1 {L}")
    base = NS - TAIL
    vm.q = [x[0] + str(int(x[1:]) + base - HEAD) for x in q0]
    def fl_issue():
        vm.issue("F0"); return f"buffer_load_dword {V(fl)}, {V(vFl)}, {S(sWS,4)}, 0 offen offset:128 sc1"
    Lslow = a.label("G2SLOW"); Lback = a.label("G2BACK")
    def fl_check():
        return f"v_cmp_ne_u32 vcc, 1, {V(fl)}\ns_nop 4\ns_cbranch_vccnz {Lslow}\n{Lback}:"
    ex = {base: [lambda: wo_dma(0), lambda: wo_dma(1)], base+1: [lambda: wo_dma(2), lambda: wo_dma(3)]}
    if MODE["mega"]:
        ex[base] = [fl_issue] + ex[base]
        ex[base+3] = [lambda: vwait('F0') + fl_check()]
    ex[base+4] = [lambda: o_load(0), lambda: o_load(1), lambda: o_load(2)]
    def g_load():
        vm.issue("G0", 2)
        return f"buffer_load_dword {V(gA+1)}, {V(gA)}, {S(sWS,4)}, 0 offen{SC()}\nbuffer_load_dword {V(gB+1)}, {V(gB)}, {S(sWS,4)}, 0 offen{SC()}"
    ex[base+4] = [g_load] + ex[base+4]
    ex[base+5] = [lambda: o_load(3), lambda: o_load(4), lambda: o_load(5)]
    ex[base+7] = [lambda: wo_dma(4), lambda: wo_dma(5)]
    for k in range(base, NS):
        step(k, ex.get(k, ()))
        if k == base + 3: assert "F0" not in vm.q
    a("s_setprio 3")
    pf = xr + 24
    def rd_p(j):
        for b3 in range(3):
            d = pf + 12*(j % 2) + 4*b3; off = wo_pos[j] + b3*64
            a(f"ds_read_b64_tr_b16 {V(d,2)}, {V(vOr)} offset:{off}\nds_read_b64_tr_b16 {V(d+2,2)}, {V(vOr)} offset:{off + 8*192}")
    assert "P0" not in vm.q
    stamp(a, 7)
    rd_p(0)
    for j in (6, 7, 8): a(o_load(j))
    a(vwait("G0"))
    for wb in range(2):
        g = (gA if wb == 0 else gB) + 1
        for i in range(48): a(f"v_mul_f32 {V(accv(0,wb)+i)}, {V(accv(0,wb)+i)}, {V(g)}")
    for j in range(9):
        a(vwait(f"O{j}", f"P{j+1}"))
        if j < 8:
            rd_p(j+1); a("s_waitcnt lgkmcnt(6)")
        else: a("s_waitcnt lgkmcnt(0)")
        if j < 3: a(wo_dma(6 + j))
        for b2 in range(2):
            for b3 in range(3): a(mfma(accv(b3, b2), pf + 12*(j % 2) + 4*b3, ofr(j) + 4*b2))
    va.release(mk)
    stamp(a, 8)
    reduce4_96x64(a, va, accv, sWave, sM0, vL, sT0, G2R)
    a(f"s_mul_i32 {S(sT0)}, {S(sDt)}, 192\ns_lshr_b32 {S(sT1)}, {S(sWave)}, 1\ns_lshl_b32 {S(sT1)}, {S(sT1)}, 5\ns_add_u32 {S(sT0)}, {S(sT0)}, {S(sT1)}")
    a(f"v_lshlrev_b32 {V(b2r)}, 16, {V(b2r)}\nv_mul_f32 {V(b2r)}, {V(b2r)}, {V(gA+1)}")
    for b3 in range(3):
        b = accv(b3, 0)
        for i in range(8): a(f"v_add_f32 {V(b+i)}, {V(b+i)}, {V(b2r)}")
        for i in range(4): a(f"v_cvt_pk_bf16_f32 {V(b+8+i)}, {V(b+2*i)}, {V(b+2*i+1)}")
        a(f"v_permlane32_swap_b32 {V(b+8)}, {V(b+10)}\nv_permlane32_swap_b32 {V(b+9)}, {V(b+11)}")
        a(f"buffer_store_dwordx4 {V(b+8,4)}, {V(vO)}, s[48:51], {S(sT0)} offen offset:{b3*64}")
    R["tailcode"] = None
    if MODE["mega"]:
        def tc():
            a(f"{Lslow}:")
            poll(a, sWS, vFl, "0", fl, sT1)
            a(f"s_branch {Lback}")
        R["tailcode"] = tc
```

```python
from m_common import *
LN_ROW = 1216
E = 72
def red8(a, v):
    m = "row_mask:0xf bank_mask:0xf"
    for p in ("quad_perm:[1,0,3,2]", "quad_perm:[2,3,0,1]", "row_half_mirror"):
        a(f"v_add_f32_dpp {V(v)}, {V(v)}, {V(v)} {p} {m}")
def unpack(a, dst, src):
    for m in range(E//2): a(f"v_lshlrev_b32 {V(dst+2*m)}, 16, {V(src+m)}\nv_and_b32 {V(dst+2*m+1)}, 0xffff0000, {V(src+m)}")
def fin(a, acc):
    a(f"v_pk_add_f32 {V(acc,2)}, {V(acc,2)}, {V(acc+2,2)}\nv_add_f32 {V(acc)}, {V(acc)}, {V(acc+1)}")
    red8(a, acc)
def psum(a, acc, src):
    a(f"v_pk_add_f32 {V(acc,2)}, {V(src,2)}, {V(src+2,2)}\nv_pk_add_f32 {V(acc+2,2)}, {V(src+4,2)}, {V(src+6,2)}")
    for i in range(8, E, 4): a(f"v_pk_add_f32 {V(acc,2)}, {V(acc,2)}, {V(src+i,2)}\nv_pk_add_f32 {V(acc+2,2)}, {V(acc+2,2)}, {V(src+i+2,2)}")
    fin(a, acc)
def x_loads(a, va, sJ):
    sT0, sT1 = 21, 22
    xr = va.alloc(36, 4); lnoff = va.alloc(); goff = va.alloc(); ltok = va.alloc()
    a(f"s_lshl_b32 {S(sT0)}, {S(sWave)}, 3\nv_lshrrev_b32 {V(ltok)}, 3, {V(vLane)}\nv_add_u32 {V(ltok)}, {S(sT0)}, {V(ltok)}")
    a(f"v_mul_u32_u24 {V(lnoff)}, 1152, {V(ltok)}\nv_and_b32 {V(goff)}, 7, {V(vLane)}\nv_lshlrev_b32 {V(goff)}, 4, {V(goff)}\nv_add_u32 {V(lnoff)}, {V(lnoff)}, {V(goff)}")
    a(f"s_mul_i32 {S(sT1)}, {S(sJ)}, {32*1152}")
    a("s_waitcnt lgkmcnt(0)")
    srd(a, 4, "x")
    for m in range(9): a(f"buffer_load_dwordx4 {V(xr+4*m,4)}, {V(lnoff)}, s[4:7], {S(sT1)} offen offset:{m*128}")
    entry_fin(a)
    return xr, goff, ltok

def body_ln(a, va, sJ):
    sT0, sT1, sT2 = 21, 22, 23
    t0, t1 = vT, vT+1
    lane, hh = vLane, vH
    mk = va.mark()
    xr, goff, ltok = x_loads(a, va, sJ)
    nz = 0
    if MODE["mega"]:
        a(f"s_lshl_b32 {S(sT0)}, {S(sJ)}, 8\ns_add_u32 {S(sT0)}, {S(sT0)}, {WS_FL}")
        a(f"v_mov_b32 {V(t0)}, 0\nv_lshlrev_b32 {V(t1)}, 7, {V(lane)}\ns_mov_b64 exec, 3\nbuffer_store_dword {V(t0)}, {V(t1)}, {S(sWS,4)}, {S(sT0)} offen sc1\ns_mov_b64 exec, -1"); nz = 1
    xf = va.alloc(E, 4); ta = va.alloc(E, 4); acc = va.alloc(4, 2); mp = va.alloc(2, 2); rs = va.alloc(2, 2)
    hb = xr; tr = xf
    wad = va.alloc(); rad = va.alloc()
    a(f"v_mul_u32_u24 {V(wad)}, {LN_ROW}, {V(ltok)}\nv_add_u32 {V(wad)}, {V(wad)}, {V(goff)}")
    a(f"v_bfe_u32 {V(t1)}, {V(lane)}, 2, 2\nv_lshl_add_u32 {V(t1)}, {V(hh)}, 3, {V(t1)}\nv_mul_u32_u24 {V(rad)}, {LN_ROW}, {V(t1)}")
    a(f"v_bfe_u32 {V(t1)}, {V(lane)}, 4, 1\nv_lshl_add_u32 {V(rad)}, {V(t1)}, 5, {V(rad)}")
    a(f"v_and_b32 {V(t1)}, 3, {V(lane)}\nv_lshl_add_u32 {V(rad)}, {V(t1)}, 3, {V(rad)}")
    a(f"s_and_b32 {S(sT0)}, {S(sWave)}, 1\ns_mul_i32 {S(sT1)}, {S(sT0)}, {16*LN_ROW}\ns_lshr_b32 s24, {S(sWave)}, 1\ns_lshl_b32 s25, s24, 6\ns_add_u32 {S(sT1)}, {S(sT1)}, s25\nv_add_u32 {V(rad)}, {S(sT1)}, {V(rad)}")
    a(f"s_lshl_b32 {S(sT2)}, {S(sJ)}, 1\ns_add_u32 {S(sT2)}, {S(sT2)}, {S(sT0)}\ns_mul_i32 {S(sT2)}, {S(sT2)}, 3072")
    if WS_HT: a(f"s_add_u32 {S(sT2)}, {S(sT2)}, {WS_HT}")
    for p in range(9):
        o0, o1 = [(B // 3)*393216 + (B % 3)*1024 for B in (2*p, 2*p+1)]
        a(f"s_cmp_eq_u32 s24, 0\ns_mov_b32 s27, {o1}\ns_cselect_b32 s27, {o0}, s27\ns_add_u32 s{28+p}, s27, {S(sT2)}")
    a(f"s_waitcnt vmcnt({nz})")
    stamp(a, 1)
    unpack(a, xf, xr)
    psum(a, acc, xf)
    a(f"v_mul_f32 {V(mp)}, {f32(-1.0/576)}, {V(acc)}\nv_mov_b32 {V(mp+1)}, {V(mp)}")
    for i in range(0, E, 2): a(f"v_pk_add_f32 {V(ta+i,2)}, {V(xf+i,2)}, {V(mp,2)}")
    a(f"v_pk_mul_f32 {V(acc,2)}, {V(ta,2)}, {V(ta,2)}\nv_pk_mul_f32 {V(acc+2,2)}, {V(ta+2,2)}, {V(ta+2,2)}")
    for i in range(4, E, 4): a(f"v_pk_fma_f32 {V(acc,2)}, {V(ta+i,2)}, {V(ta+i,2)}, {V(acc,2)}\nv_pk_fma_f32 {V(acc+2,2)}, {V(ta+i+2,2)}, {V(ta+i+2,2)}, {V(acc+2,2)}")
    rnd_bf16(a, mp, mp)
    a(f"v_mov_b32 {V(mp+1)}, {V(mp)}")
    fin(a, acc)
    a(f"v_mul_f32 {V(acc)}, {f32(1.0/576)}, {V(acc)}")
    rnd_bf16(a, acc, acc)
    a(f"v_add_f32 {V(acc)}, {f32(1e-5)}, {V(acc)}")
    rnd_bf16(a, acc, acc)
    a(f"v_sqrt_f32 {V(acc)}, {V(acc)}")
    for i in range(0, E, 2): a(f"v_pk_add_f32 {V(ta+i,2)}, {V(xf+i,2)}, {V(mp,2)}")
    rnd_bf16(a, acc, acc)
    a(f"v_rcp_f32 {V(rs)}, {V(acc)}")
    for m in range(E//2): a(f"v_cvt_pk_bf16_f32 {V(hb+m)}, {V(ta+2*m)}, {V(ta+2*m+1)}")
    a(f"v_mov_b32 {V(rs+1)}, {V(rs)}")
    unpack(a, ta, hb)
    for m in range(9):
        for i in range(8*m, 8*m+8, 2): a(f"v_pk_mul_f32 {V(ta+i,2)}, {V(ta+i,2)}, {V(rs,2)}")
        for i in range(4): a(f"v_cvt_pk_bf16_f32 {V(hb+4*m+i)}, {V(ta+8*m+2*i)}, {V(ta+8*m+2*i+1)}")
        a(f"ds_write_b128 {V(wad)}, {V(hb+4*m,4)} offset:{m*128}")
    a("s_waitcnt lgkmcnt(0)\ns_barrier")
    def rd(p): a(f"ds_read_b64_tr_b16 {V(tr+4*p,2)}, {V(rad)} offset:{p*128}\nds_read_b64_tr_b16 {V(tr+4*p+2,2)}, {V(rad)} offset:{p*128 + 4*LN_ROW}")
    for p in range(7): rd(p)
    for p in range(9):
        a(f"s_waitcnt lgkmcnt({min(12, 2*(8-p))})")
        a(f"buffer_store_dwordx4 {V(tr+4*p,4)}, {V(vL)}, {S(sWS,4)}, s{28+p} offen{SC()}")
        if p + 7 < 9: rd(p+7)
    stamp(a, 9)
    signal(a, sDBG, "0", 64)
    stamp(a, 10)
    if not MODE["mega"]: a("s_barrier")
    va.release(mk)

def body_gate(a, va, sJ):
    sT0 = 21
    t3 = vT+3
    mk = va.mark()
    xr, goff, ltok = x_loads(a, va, sJ)
    gr = va.alloc(36, 4); xf = va.alloc(E, 4); gf = va.alloc(E, 4); acc = va.alloc(4, 2); gg = va.alloc(2, 2)
    srd(a, 8, "gw")
    for m in range(9): a(f"buffer_load_dwordx4 {V(gr+4*m,4)}, {V(goff)}, s[8:11], 0 offen offset:{m*128}")
    a(f"v_lshlrev_b32 {V(t3)}, 3, {V(ltok)}\ns_lshl_b32 {S(sT0)}, {S(sJ)}, 8\ns_add_u32 {S(sT0)}, {S(sT0)}, {WS_G}")
    a("s_waitcnt vmcnt(0)")
    unpack(a, gf, gr); unpack(a, xf, xr)
    for i in range(0, E, 2): a(f"v_pk_mul_f32 {V(xf+i,2)}, {V(xf+i,2)}, {V(gf+i,2)}")
    for m in range(E//2): a(f"v_cvt_pk_bf16_f32 {V(xr+m)}, {V(xf+2*m)}, {V(xf+2*m+1)}")
    unpack(a, xf, xr)
    psum(a, acc, xf)
    rnd_bf16(a, acc, acc)
    a(f"v_mul_f32 {V(acc)}, {f32(-math.log2(math.e))}, {V(acc)}\nv_exp_f32 {V(acc)}, {V(acc)}\nv_add_f32 {V(acc)}, 1.0, {V(acc)}\nv_rcp_f32 {V(acc)}, {V(acc)}")
    rnd_bf16(a, gg, acc)
    a(f"v_sub_f32 {V(gg+1)}, 1.0, {V(gg)}")
    rnd_bf16(a, gg+1, gg+1)
    a(f"s_mov_b32 exec_lo, 0x01010101\ns_mov_b32 exec_hi, 0x01010101")
    a(f"buffer_store_dwordx2 {V(gg,2)}, {V(t3)}, {S(sWS,4)}, {S(sT0)} offen{SC()}")
    a("s_mov_b64 exec, -1")
    va.release(mk)
```

```python
from m_common import *
QSLOT = 18432
def body_qkv(a, va):
    sX, sW = 4, 8
    sTg, sNg, sXoff, sWoff, sXm0, sWm0, sPart, sHg, sT0, sT1, sT2, sMain, sHs, sTail, sTs, sOdd, sScale, sRot = range(21, 39)
    t0, t1, t2, t3 = vT, vT+1, vT+2, vT+3
    lane, hh, l31 = vLane, vH, vL31
    Lv = a.label("QV"); Ldone = a.label("QDONE")
    a(f"s_and_b32 {S(sT0)}, s2, 3\ns_lshl_b32 {S(sT0)}, {S(sT0)}, 2\ns_bfe_u32 {S(sT1)}, s2, 0x20003\ns_add_u32 {S(sTg)}, {S(sT0)}, {S(sT1)}")
    a(f"s_bfe_u32 {S(sT0)}, s2, 0x10002\ns_mul_i32 {S(sT0)}, {S(sT0)}, 6\ns_lshr_b32 {S(sT1)}, s2, 5\ns_add_u32 {S(sNg)}, {S(sT0)}, {S(sT1)}")
    a(f"s_lshr_b32 {S(sPart)}, {S(sNg)}, 2\ns_and_b32 {S(sHg)}, {S(sNg)}, 3\ns_and_b32 {S(sOdd)}, {S(sNg)}, 1")
    a(f"s_mul_i32 {S(sXoff)}, {S(sTg)}, {128*1152}\ns_mul_i32 {S(sWoff)}, {S(sNg)}, 288")
    a(f"s_lshl_b32 {S(sXm0)}, {S(sWave)}, 11\ns_lshl_b32 {S(sWm0)}, {S(sWave)}, 10\ns_add_u32 {S(sWm0)}, {S(sWm0)}, 8192")
    if CFG["rot"]:
        a(f"s_lshr_b32 {S(sT0)}, s2, 5\ns_mul_i32 {S(sRot)}, {S(sT0)}, 3\ns_bfe_u32 {S(sT1)}, s2, 0x20003\ns_mul_i32 {S(sT1)}, {S(sT1)}, 9\ns_add_u32 {S(sT1)}, {S(sT1)}, 1\ns_lshr_b32 {S(sT1)}, {S(sT1)}, 1")
        a(f"s_add_u32 {S(sRot)}, {S(sRot)}, {S(sT1)}\ns_sub_u32 {S(sT0)}, {S(sRot)}, 18\ns_cmp_ge_u32 {S(sRot)}, 18\ns_cselect_b32 {S(sRot)}, {S(sT0)}, {S(sRot)}")
    else: a(f"s_mov_b32 {S(sRot)}, 0")
    xsrc = va.alloc(2); wsrc = va.alloc(3)
    a(f"s_lshl_b32 {S(sT0)}, {S(sWave)}, 5")
    a(f"v_lshrrev_b32 {V(t1)}, 2, {V(lane)}\nv_add_u32 {V(t1)}, {S(sT0)}, {V(t1)}\nv_mul_u32_u24 {V(t1)}, 1152, {V(t1)}")
    a(f"v_lshrrev_b32 {V(t2)}, 4, {V(lane)}\nv_and_b32 {V(t3)}, 3, {V(lane)}\nv_xor_b32 {V(t2)}, {V(t2)}, {V(t3)}")
    a(f"v_lshl_add_u32 {V(xsrc)}, {V(t2)}, 4, {V(t1)}\nv_add_u32 {V(xsrc+1)}, {16*1152}, {V(xsrc)}")
    a(f"s_lshl_b32 {S(sT0)}, {S(sWave)}, 6\ns_cmp_eq_u32 {S(sOdd)}, 1\ns_cselect_b32 {S(sT1)}, 2, 16\ns_add_u32 {S(sT2)}, {S(sT1)}, 2")
    for i in range(3):
        a(f"v_add_u32 {V(t1)}, {S(sT0)}, {V(lane)}")
        if i: a(f"v_add_u32 {V(t1)}, {256*i}, {V(t1)}")
        a(f"v_mul_u32_u24 {V(t2)}, 3277, {V(t1)}\nv_lshrrev_b32 {V(t2)}, 16, {V(t2)}")
        a(f"v_mul_u32_u24 {V(t3)}, 20, {V(t2)}\nv_sub_u32 {V(t3)}, {V(t1)}, {V(t3)}")
        a(f"v_mul_u32_u24 {V(t2)}, 3456, {V(t2)}\nv_lshl_add_u32 {V(t2)}, {V(t3)}, 4, {V(t2)}")
        a(f"v_cmp_le_u32 vcc, {S(sT1)}, {V(t3)}\nv_mov_b32 {V(t1)}, {OOB}\nv_cndmask_b32 {V(t1)}, {V(t2)}, {V(t1)}, vcc")
        a(f"v_cmp_le_u32 vcc, {S(sT2)}, {V(t3)}\nv_subrev_u32 {V(t2)}, 32, {V(t2)}\nv_cndmask_b32 {V(wsrc+i)}, {V(t1)}, {V(t2)}, vcc")
    for idx in range(768): assert (idx*3277) >> 16 == idx // 20
    def dma_stage(st, vm):
        slot = st % 4
        out = []
        out.append(f"s_lshl_b32 {S(sT0)}, {S(sRot)}, 6\ns_add_u32 m0, {S(sXm0)}, {slot*QSLOT}\ns_add_u32 {S(sT0)}, {S(sXoff)}, {S(sT0)}\nbuffer_load_dwordx4 {V(xsrc)}, {S(sX,4)}, {S(sT0)} offen lds")
        out.append(f"s_mul_i32 {S(sT1)}, {S(sRot)}, {32*3456}\ns_add_u32 m0, {S(sXm0)}, {slot*QSLOT+1024}\ns_add_u32 {S(sT1)}, {S(sWoff)}, {S(sT1)}\nbuffer_load_dwordx4 {V(xsrc+1)}, {S(sX,4)}, {S(sT0)} offen lds")
        Ls = a.label("QS")
        out.append(f"s_add_u32 m0, {S(sWm0)}, {slot*QSLOT+8192}\ns_cmp_ge_u32 {S(sWave)}, 2\ns_cbranch_scc1 {Ls}\nbuffer_load_dwordx4 {V(wsrc+2)}, {S(sW,4)}, {S(sT1)} offen lds\n{Ls}:")
        for i in range(2):
            fill = f"s_add_u32 {S(sRot)}, {S(sRot)}, 1" if i == 0 else f"s_cmp_eq_u32 {S(sRot)}, 18"
            out.append(f"s_add_u32 m0, {S(sWm0)}, {slot*QSLOT+i*4096}\n{fill}\nbuffer_load_dwordx4 {V(wsrc+i)}, {S(sW,4)}, {S(sT1)} offen lds" + (f"\ns_cselect_b32 {S(sRot)}, 0, {S(sRot)}" if i else ""))
        vm.issue(f"st{st}", 4)
        return out
    a("s_waitcnt lgkmcnt(0)")
    entry_fin(a)
    for r, n in ((sX, "x"), (sW, "wqkv")): srd(a, r, n)
    vm = VmTrack()
    for st in range(4):
        for x in dma_stage(st, vm): a(x)
    xrd = va.alloc(2); wA = va.alloc(); wB = va.alloc(); wT = va.alloc()
    a(f"v_bfe_u32 {V(t1)}, {V(l31)}, 2, 2\nv_lshlrev_b32 {V(t2)}, 6, {V(l31)}\nv_add_u32 {V(t2)}, {S(sXm0)}, {V(t2)}")
    for ks in range(2):
        a(f"v_add_u32 {V(t3)}, {2*ks}, {V(hh)}\nv_xor_b32 {V(t3)}, {V(t3)}, {V(t1)}\nv_lshl_add_u32 {V(xrd+ks)}, {V(t3)}, 4, {V(t2)}")
    a(f"v_bfe_u32 {V(t1)}, {V(lane)}, 2, 2\nv_lshl_add_u32 {V(t1)}, {V(hh)}, 3, {V(t1)}\nv_mul_u32_u24 {V(t1)}, 320, {V(t1)}\nv_add_u32 {V(t1)}, 8192, {V(t1)}")
    a(f"v_bfe_u32 {V(t2)}, {V(lane)}, 4, 1\nv_and_b32 {V(t3)}, 3, {V(lane)}")
    a(f"v_mul_u32_u24 {V(wA)}, 288, {V(t2)}\nv_lshl_add_u32 {V(wA)}, {V(t3)}, 3, {V(wA)}\nv_add_u32 {V(wA)}, {V(wA)}, {V(t1)}")
    a(f"s_lshl_b32 {S(sT0)}, {S(sOdd)}, 5\ns_add_u32 {S(sT0)}, {S(sT0)}, 32\nv_add_u32 {V(t1)}, {S(sT0)}, {V(t1)}")
    a(f"v_lshl_add_u32 {V(wB)}, {V(t2)}, 5, {V(t1)}\nv_lshl_add_u32 {V(wB)}, {V(t3)}, 3, {V(wB)}\nv_add_u32 {V(wB)}, 8, {V(wB)}")
    a(f"v_mul_u32_u24 {V(wT)}, 72, {V(t3)}\nv_add_u32 {V(wT)}, {V(wT)}, {V(t1)}")
    acc = va.alloc(80, 4); xf = va.alloc(8, 4); wf = va.alloc(20, 4); pk = va.alloc(8, 4); so = va.alloc(); so2 = va.alloc(); so3 = va.alloc(); f0a = va.alloc(); f0v = va.alloc()
    a(f"v_mov_b32 {V(f0a)}, 0")
    a(f"s_lshl_b32 {S(sT2)}, {S(sTg)}, 2\ns_add_u32 {S(sT2)}, {S(sT2)}, {S(sWave)}")
    def rd_x(k):
        st, ks = divmod(k, 2)
        a(f"ds_read_b128 {V(xf+4*(k%2),4)}, {V(xrd+ks)} offset:{(st%4)*QSLOT}")
    def rd_w(k, j):
        st, ks = divmod(k, 2)
        base = wA if j == 0 else (wT if j == 4 else wB)
        off = (st % 4)*QSLOT + ks*5120 + (72*(j-1) if 1 <= j <= 3 else 0)
        a(f"ds_read_b64_tr_b16 {V(wf+4*j,2)}, {V(base)} offset:{off}")
        a(f"ds_read_b64_tr_b16 {V(wf+4*j+2,2)}, {V(base)} offset:{off+1280}")
    def mainloop(vm, vpart):
        a(f"s_waitcnt vmcnt({vm.wait('st0')})\ns_barrier")
        stamp(a, 1)
        rd_x(0)
        for j in range(5): rd_w(0, j)
        for k in range(36):
            st, ks = divmod(k, 2)
            last = k == 35
            sync = ks == 1 and not last
            dm = []
            if sync:
                a(f"s_waitcnt vmcnt({vm.wait(f'st{st+1}')}) lgkmcnt(0)\ns_barrier")
                if st + 4 < 18: dm = dma_stage(st + 4, vm)
                if st == 15 and MODE["mega"]:
                    a(f"buffer_load_dword {V(f0v)}, {V(f0a)}, {S(sDBG,4)}, 0 offen offset:128 sc1"); vm.issue("f0")
            for j in range(5):
                if not sync:
                    n = (8 if j == 0 else 9) if not last else 2*(4-j)
                    a(f"s_waitcnt lgkmcnt({n})")
                x = xf + 4*(k % 2); w = wf + 4*j
                c = "0" if k == 0 else None
                a(mfma(acc+16*j, x, w, c) if vpart else mfma(acc+16*j, w, x, c))
                if dm: a(dm[j])
                if not last:
                    if j == 0: rd_x(k+1)
                    rd_w(k+1, j)
        stamp(a, 2)
    heads = [(0, 7), (1, 2), (3, 4), (5, 6)]
    vm2 = copy.deepcopy(vm)
    a(f"s_cmp_eq_u32 {S(sPart)}, 2\ns_cbranch_scc1 {Lv}")
    Lk = a.label("QK"); Lqk = a.label("QQK")
    a(f"s_cmp_eq_u32 {S(sPart)}, 1\ns_cbranch_scc1 {Lk}")
    a(f"s_lshl_b32 {S(sMain)}, {S(sHg)}, 19\ns_lshl_b32 {S(sT0)}, {S(sT2)}, 10\ns_add_u32 {S(sMain)}, {S(sMain)}, {S(sT0)}\ns_add_u32 {S(sMain)}, {S(sMain)}, {WS_QF}")
    a(f"s_mov_b32 {S(sHs)}, 65536\ns_mov_b32 {S(sTs)}, 8192")
    a(f"s_lshl_b32 {S(sTail)}, {S(sHg)}, 16\ns_lshl_b32 {S(sT0)}, {S(sT2)}, 7\ns_add_u32 {S(sTail)}, {S(sTail)}, {S(sT0)}\ns_add_u32 {S(sTail)}, {S(sTail)}, {WS_QT}")
    a(f"s_mov_b32 {S(sScale)}, {f32(QSCALE)}\ns_branch {Lqk}")
    a(f"{Lk}:")
    a(f"s_mul_i32 {S(sMain)}, {S(sHg)}, {8*KVH}\ns_lshr_b32 {S(sT0)}, {S(sT2)}, 3\ns_mul_i32 {S(sT0)}, {S(sT0)}, {KVCH}\ns_add_u32 {S(sMain)}, {S(sMain)}, {S(sT0)}")
    a(f"s_add_u32 {S(sMain)}, {S(sMain)}, {WS_KV}\ns_and_b32 {S(sT0)}, {S(sT2)}, 7\ns_lshl_b32 {S(sT1)}, {S(sT0)}, 7")
    a(f"s_add_u32 {S(sTail)}, {S(sMain)}, {S(sT1)}\ns_add_u32 {S(sTail)}, {S(sTail)}, 8192")
    a(f"s_lshl_b32 {S(sT0)}, {S(sT0)}, 10\ns_add_u32 {S(sMain)}, {S(sMain)}, {S(sT0)}")
    a(f"s_mov_b32 {S(sHs)}, {KVH}\ns_mov_b32 {S(sTs)}, {KVH}\ns_mov_b32 {S(sScale)}, 1.0")
    a(f"{Lqk}:")
    a(f"v_mul_lo_u32 {V(so2)}, {V(hh)}, {S(sTs)}\nv_lshlrev_b32 {V(so2)}, 1, {V(so2)}\nv_lshl_add_u32 {V(so2)}, {V(l31)}, 2, {V(so2)}")
    mainloop(vm, False)
    for j in range(4):
        for hf in range(2):
            b = acc + 16*j + 8*hf; p = pk + 4*hf
            a(f"s_mul_i32 {S(sT0)}, {S(sHs)}, {heads[j][hf]}\ns_add_u32 {S(sT0)}, {S(sT0)}, {S(sMain)}")
            for i in range(8): a(f"v_mul_f32 {V(b+i)}, {S(sScale)}, {V(b+i)}")
            for i in range(4): a(f"v_cvt_pk_bf16_f32 {V(p+i)}, {V(b+2*i)}, {V(b+2*i+1)}")
            a(f"buffer_store_dwordx4 {V(p,4)}, {V(vL)}, {S(sWS,4)}, {S(sT0)} offen{SC()}")
    b = acc + 64
    for i in range(8): a(f"v_mul_f32 {V(b+i)}, {S(sScale)}, {V(b+i)}")
    for i in range(4): a(f"v_cvt_pk_bf16_f32 {V(b+8+i)}, {V(b+2*i)}, {V(b+2*i+1)}")
    for i, mult in enumerate((0, 1, 4, 5)):
        a(f"s_mul_i32 {S(sT0)}, {S(sTs)}, {mult}\ns_add_u32 {S(sT0)}, {S(sT0)}, {S(sTail)}")
        a(f"buffer_store_dword {V(b+8+i)}, {V(so2)}, {S(sWS,4)}, {S(sT0)} offen{SC()}")
    a(f"s_branch {Ldone}")
    a(f"{Lv}:")
    a(f"s_mul_i32 {S(sMain)}, {S(sHg)}, {8*KVH}\ns_lshr_b32 {S(sT0)}, {S(sT2)}, 3\ns_mul_i32 {S(sT0)}, {S(sT0)}, {KVCH}\ns_add_u32 {S(sMain)}, {S(sMain)}, {S(sT0)}")
    a(f"s_and_b32 {S(sT0)}, {S(sT2)}, 7\ns_mul_i32 {S(sT0)}, {S(sT0)}, 1280\ns_add_u32 {S(sMain)}, {S(sMain)}, {S(sT0)}\ns_add_u32 {S(sMain)}, {S(sMain)}, {WS_KV + 9216}")
    a(f"v_bfe_u32 {V(t1)}, {V(lane)}, 4, 1\nv_mul_u32_u24 {V(t2)}, 320, {V(hh)}\nv_and_b32 {V(t3)}, 15, {V(lane)}\nv_lshl_add_u32 {V(t0)}, {V(t3)}, 4, {V(t2)}")
    a(f"v_mul_u32_u24 {V(so)}, {7*KVH+32}, {V(t1)}\nv_add_u32 {V(so)}, {V(so)}, {V(t0)}")
    a(f"v_mul_u32_u24 {V(so3)}, {KVH-32}, {V(t1)}\nv_add3_u32 {V(so3)}, {V(so3)}, {V(t0)}, 32")
    a(f"v_lshrrev_b32 {V(t3)}, 1, {V(t3)}\nv_mul_u32_u24 {V(so2)}, {KVH}, {V(t3)}\nv_add_u32 {V(so2)}, {V(so2)}, {V(t2)}")
    a(f"v_and_b32 {V(t2)}, 2, {V(lane)}\nv_xor_b32 {V(t2)}, 2, {V(t2)}\nv_lshlrev_b32 {V(t2)}, 3, {V(t2)}")
    a(f"v_cmp_eq_u32 vcc, 1, {V(t1)}\nv_cndmask_b32 {V(t2)}, {V(t2)}, 18, vcc")
    a(f"v_and_b32 {V(t3)}, 1, {V(lane)}\nv_add_u32 {V(t2)}, {V(t2)}, {V(t3)}\nv_lshl_add_u32 {V(so2)}, {V(t2)}, 4, {V(so2)}")
    a(f"v_mov_b32 {V(t2)}, 0x3f803f80\nv_cmp_eq_u32 {S(40,2)}, 1, {V(t3)}\nv_cndmask_b32 {V(t0)}, {V(t2)}, 0, {S(40,2)}")
    mainloop(vm2, True)
    for j in range(4):
        a(f"s_add_u32 {S(sT0)}, {S(sMain)}, {heads[j][0]*KVH}")
        for grp in range(2):
            b = acc + 16*j + 8*grp; p = pk + 4*grp
            for i in range(4): a(f"v_cvt_pk_bf16_f32 {V(p+i)}, {V(b+2*i)}, {V(b+2*i+1)}")
            a(f"buffer_store_dwordx4 {V(p,4)}, {V(so if j == 0 else so3)}, {S(sWS,4)}, {S(sT0)} offen offset:{grp*640}{SC()}")
    for grp in range(2):
        b = acc + 64 + 8*grp; p = pk + 4*grp
        for i in range(4):
            a(f"v_cvt_pk_bf16_f32 {V(p+i)}, {V(b+2*i)}, {V(b+2*i+1)}")
            a(f"v_cndmask_b32 {V(p+i)}, {V(p+i)}, {V(t0)}, vcc")
        a(f"buffer_store_dwordx4 {V(p,4)}, {V(so2)}, {S(sWS,4)}, {S(sMain)} offen offset:{grp*640}{SC()}")
    a(f"{Ldone}:")
    a(f"s_lshl_b32 {S(sT0)}, {S(sHg)}, 8\ns_add_u32 {S(sT0)}, {S(sT0)}, {WS_FL + FQ_G*256}")
    if MODE["mega"]:
        Lok = a.label("QF0")
        a(f"s_waitcnt vmcnt(0)\nv_cmp_ne_u32 vcc, 1, {V(f0v)}\ns_nop 4\ns_cbranch_vccz {Lok}")
        poll_f0(a, sT1, both=True)
        a(f"{Lok}:")
    stamp(a, 6)
    signal(a, sWS, S(sT0), 48)
    stamp(a, 7)
```

```python
from common import *

def gelu_inplace(a, regs, tmp):
    c0 = -2.0 * math.sqrt(2.0 / math.pi) * math.log2(math.e)
    c1 = c0 * 0.044715
    n = len(regs)
    for i, r in enumerate(regs): a(f"v_mul_f32 {V(tmp+i)}, {V(r)}, {V(r)}")
    for i, r in enumerate(regs): a(f"v_fma_f32 {V(tmp+i)}, {V(tmp+i)}, s60, v1")
    for i, r in enumerate(regs): a(f"v_mul_f32 {V(tmp+i)}, {V(tmp+i)}, {V(r)}")
    for i, r in enumerate(regs): a(f"v_exp_f32 {V(tmp+i)}, {V(tmp+i)}")
    for i, r in enumerate(regs): a(f"v_add_f32 {V(tmp+i)}, 1.0, {V(tmp+i)}")
    for i, r in enumerate(regs): a(f"v_rcp_f32 {V(tmp+i)}, {V(tmp+i)}")
    for i, r in enumerate(regs): a(f"v_mul_f32 {V(r)}, {V(r)}, {V(tmp+i)}")
    return c0, c1

def pgemm_loop(a, va, P):
    nX, nW, NS, N = P["nX"], P["nW"], P["NS"], P["N"]
    xb_ = va.alloc(4*nX*N, 4); wf = va.alloc(4*nW*2, 4)
    vm = P["vm"]
    slotb = nW * 1024
    def issue_x(k):
        for b in range(nX):
            a(f"buffer_load_dwordx4 {V(xb_ + 4*(nX*(k % N) + b), 4)}, {V(P['vXoff'])}, {S(P['sXsrd'],4)}, {S(P['sXoff'])} offen offset:{b*1024}")
        a(f"s_add_u32 {S(P['sXoff'])}, {S(P['sXoff'])}, {nX*1024}")
        vm.issue(f"X{k}", nX)
    def issue_w1(k, i):
        a(f"s_add_u32 m0, {S(P['sM0'])}, {(k % N)*slotb + i*1024}")
        a(f"buffer_load_dwordx4 {V(P['vWsrc'])}, {S(P['sWsrd'],4)}, {S(P['sWoff'])} offen lds")
        a(f"s_add_u32 {S(P['sWoff'])}, {S(P['sWoff'])}, {P['wrow']}")
        vm.issue(f"W{k}")
    def issue_w(k):
        for i in range(nW): issue_w1(k, i)
    def rd_w(k, b):
        d = wf + 4*(nW*(k % 2) + b); off = (k % N)*slotb
        a(f"ds_read_b64_tr_b16 {V(d,2)}, {V(P['vWrd']+b)} offset:{off}")
        a(f"ds_read_b64_tr_b16 {V(d+2,2)}, {V(P['vWrd']+b)} offset:{off + P['rd2']}")
    issue_w(0)
    for k in range(N-1):
        issue_x(k); issue_w(k+1)
    if P.get("mid"): P["mid"]()
    stamp(a, 1)
    a(f"s_waitcnt vmcnt({vm.wait('X0')})")
    stamp(a, 2)
    for b in range(nW): rd_w(0, b)
    def step(k, first=False):
        order = [(xb, wb) for wb in range(nW) for xb in range(nX)]
        fill = []
        if k + N - 1 < NS: fill.append(lambda: issue_x(k + N - 1))
        if k + N < NS:
            for i in range(nW): fill.append(lambda i=i: issue_w1(k + N, i))
        if k + 1 < NS:
            fill.append(lambda: a(f"s_waitcnt vmcnt({vm.wait(f'X{k+1}')})"))
            for b in range(nW): fill.append(lambda b=b: rd_w(k + 1, b))
        a("s_waitcnt lgkmcnt(0)")
        nm = len(order)
        gaps = max(1, nm - P.get("tailgap", 2))
        per = [[] for _ in range(nm)]
        for i, f in enumerate(fill): per[i * gaps // len(fill)].append(f)
        for m, (xb, wb) in enumerate(order):
            kind, base = P["acc"](xb, wb)
            x = xb_ + 4*(nX*(k % N) + xb); w = wf + 4*(nW*(k % 2) + wb)
            a(mfma(base, x, w, None, kind) if P["x_first"] else mfma(base, w, x, None, kind))
            for f in per[m]: f()
    assert NS % N == 0 and N % 2 == 0
    nit = NS // N - 1
    L = a.label("PG")
    a(f"s_mov_b32 {S(P['sCnt'])}, {nit}")
    a(f".p2align 4\n{L}:")
    q0 = list(vm.q)
    for k in range(N): step(k)
    sh = [t[0] + str(int(t[1:]) - N) if t[0] in "XW" and t[1:].isdigit() else t for t in vm.q]
    assert sh == q0, (sh, q0)
    a(f"s_sub_u32 {S(P['sCnt'])}, {S(P['sCnt'])}, 1\ns_cmp_lg_u32 {S(P['sCnt'])}, 0\ns_cbranch_scc1 {L}")
    base = NS - N
    vm.q = [t[0] + str(int(t[1:]) + base) for t in q0]
    stamp(a, 3)
    for k in range(base, NS): step(k)
    stamp(a, 4)

def common_setup(a, va, sWave):
    lane = va.alloc(); hh = va.alloc(); l31 = va.alloc(); t = va.alloc(4)
    a(f"v_and_b32 {V(lane)}, 63, v0\nv_lshrrev_b32 {V(t)}, 6, v0\nv_readfirstlane_b32 {S(sWave)}, {V(t)}")
    a(f"v_lshrrev_b32 {V(hh)}, 5, {V(lane)}\nv_and_b32 {V(l31)}, 31, {V(lane)}")
    return lane, hh, l31, t

G1_REG = 36864
G1_LDS = 4 * G1_REG
def gen_gemm1(a, name="gemm1_kernel"):
    va = RegAlloc("v", 2, 256)
    kernel_begin(a, name)
    Lend = a.label("G1END")
    sW, sB, sWS = 4, 8, 16
    sWave, sFt, sDt, sXoff, sWoff, sM0, sCnt, sT0, sT1, sT2 = range(20, 30)
    a(f"s_cmp_ge_u32 s2, 216\ns_cbranch_scc1 {Lend}")
    stamp(a, 0)
    for r, n in ((sW, "w1"), (sB, "b1"), (sWS, "ws")): load_srd(a, r, n, 0)
    lane, hh, l31, t = common_setup(a, va, sWave)
    a(f"s_and_b32 {S(sT0)}, s2, 7\ns_mul_i32 {S(sT0)}, {S(sT0)}, 27\ns_lshr_b32 {S(sT1)}, s2, 3\ns_add_u32 {S(sT0)}, {S(sT0)}, {S(sT1)}")
    a(f"s_mul_i32 {S(sFt)}, {S(sT0)}, 171\ns_lshr_b32 {S(sFt)}, {S(sFt)}, 10\ns_mul_i32 {S(sT1)}, {S(sFt)}, 6\ns_sub_u32 {S(sDt)}, {S(sT0)}, {S(sT1)}")
    for x in range(216): assert (x*171) >> 10 == x // 6
    a(f"s_lshl_b32 {S(sT0)}, {S(sDt)}, 2\ns_add_u32 {S(sT0)}, {S(sT0)}, {S(sWave)}\ns_mul_i32 {S(sXoff)}, {S(sT0)}, {32*3072}")
    if WS_HT: a(f"s_add_u32 {S(sXoff)}, {S(sXoff)}, {WS_HT}")
    a(f"s_mul_i32 {S(sWoff)}, {S(sWave)}, {512*9216}\ns_lshl_b32 {S(sT0)}, {S(sFt)}, 8\ns_add_u32 {S(sWoff)}, {S(sWoff)}, {S(sT0)}")
    a(f"s_mul_i32 {S(sM0)}, {S(sWave)}, {G1_REG}")
    vX = va.alloc(); vWs = va.alloc(); vWr = va.alloc(4); bias = va.alloc(8, 2)
    a(f"v_lshlrev_b32 {V(vX)}, 4, {V(lane)}")
    a(f"v_lshrrev_b32 {V(t)}, 4, {V(lane)}\nv_lshlrev_b32 {V(t+1)}, 2, {V(t)}\nv_and_b32 {V(t+2)}, 15, {V(lane)}\nv_xor_b32 {V(t+1)}, {V(t+1)}, {V(t+2)}")
    a(f"v_mul_u32_u24 {V(t)}, 9216, {V(t)}\nv_lshl_add_u32 {V(vWs)}, {V(t+1)}, 4, {V(t)}")
    a(f"v_bfe_u32 {V(t)}, {V(lane)}, 2, 2\nv_lshl_add_u32 {V(t+1)}, {V(hh)}, 3, {V(t)}\nv_lshlrev_b32 {V(t+1)}, 8, {V(t+1)}")
    a(f"v_bfe_u32 {V(t+2)}, {V(lane)}, 4, 1\nv_lshl_add_u32 {V(t+1)}, {V(t+2)}, 5, {V(t+1)}")
    a(f"v_and_b32 {V(t+2)}, 3, {V(lane)}\nv_lshl_add_u32 {V(t+1)}, {V(t+2)}, 3, {V(t+1)}\nv_add_u32 {V(t+1)}, {S(sM0)}, {V(t+1)}")
    a(f"v_xor_b32 {V(t)}, {S(sWave)}, {V(t)}")
    for b in range(4): a(f"v_xor_b32 {V(t+2)}, {b}, {V(t)}\nv_lshl_add_u32 {V(vWr+b)}, {V(t+2)}, 6, {V(t+1)}")
    a("s_waitcnt lgkmcnt(0)")
    for r, n in ((sW, "w1"), (sB, "b1"), (sWS, "ws")): fin_srd(a, r, n)
    vm = VmTrack()
    a(f"s_lshl_b32 {S(sT0)}, {S(sFt)}, 8\ns_lshl_b32 {S(sT1)}, {S(sWave)}, 6\ns_add_u32 {S(sT0)}, {S(sT0)}, {S(sT1)}\nv_lshlrev_b32 {V(t)}, 3, {V(hh)}")
    for g in range(4): a(f"buffer_load_dwordx2 {V(bias+2*g,2)}, {V(t)}, {S(sB,4)}, {S(sT0)} offen offset:{16*g}")
    keep = va.alloc(48, 4)
    def acc(xb, wb): return ("v", keep + 16*xb) if wb == 0 else ("a", 48*(wb-1) + 16*xb)
    def mid():
        for i in range(48): a(f"v_mov_b32 {V(keep+i)}, 0")
        for i in range(144): a(f"v_accvgpr_write_b32 {A(i)}, 0")
    mk = va.mark()
    pgemm_loop(a, va, dict(nX=3, nW=4, NS=32, N=CFG['N1'], acc=acc, x_first=False, sXsrd=sWS, sWsrd=sW, sXoff=sXoff, sWoff=sWoff, sM0=sM0,
        vXoff=vX, vWsrc=vWs, vWrd=vWr, wrow=4*9216, rd2=1024, sCnt=sCnt, vm=vm, mid=mid, tailgap=3))
    va.release(mk)
    wa = va.alloc(); ra = va.alloc(3); rb = va.alloc(48, 4); tmp = va.alloc(16); bf = va.alloc(16); pk = va.alloc(8, 4)
    a(f"v_add_u32 {V(wa)}, {S(sM0)}, {V(vX)}")
    for s in range(1, 4):
        a(f"s_xor_b32 {S(sT0)}, {S(sWave)}, {s}\ns_mul_i32 {S(sT0)}, {S(sT0)}, {G1_REG}\ns_add_u32 {S(sT0)}, {S(sT0)}, {(s-1)*12288}")
        a(f"v_add_u32 {V(ra+s-1)}, {S(sT0)}, {V(vX)}")
    for i in range(36): a(f"ds_write_b128 {V(wa)}, {A(4*i,4)} offset:{i*1024}")
    c0 = -2.0 * math.sqrt(2.0 / math.pi) * math.log2(math.e)
    a(f"s_mov_b32 s60, {f32(c0*0.044715)}\nv_mov_b32 v1, {f32(c0)}")
    for g in range(4):
        for i in range(2):
            a(f"v_lshlrev_b32 {V(bf+4*g+2*i)}, 16, {V(bias+2*g+i)}\nv_and_b32 {V(bf+4*g+2*i+1)}, 0xffff0000, {V(bias+2*g+i)}")
    for xb in range(3):
        for i in range(16): a(f"v_add_f32 {V(keep+16*xb+i)}, {V(keep+16*xb+i)}, {V(bf+i)}")
    a(f"s_mul_i32 {S(sT0)}, {S(sDt)}, 288\ns_lshl_b32 {S(sT1)}, {S(sFt)}, 3\ns_add_u32 {S(sT0)}, {S(sT0)}, {S(sT1)}\ns_lshl_b32 {S(sT1)}, {S(sWave)}, 1")
    a(f"s_add_u32 {S(sT0)}, {S(sT0)}, {S(sT1)}\ns_mul_i32 {S(sT0)}, {S(sT0)}, 3072\ns_add_u32 {S(sT0)}, {S(sT0)}, {WS_U}\ns_add_u32 {S(sT1)}, {S(sT0)}, 3072")
    a("s_waitcnt lgkmcnt(0)\ns_barrier")
    def rd(xb):
        for s in range(3):
            for q in range(4): a(f"ds_read_b128 {V(rb+16*s+4*q,4)}, {V(ra+s)} offset:{(4*xb+q)*1024}")
    stamp(a, 5)
    rd(0)
    for xb in range(3):
        for s in range(3):
            a(f"s_waitcnt lgkmcnt({8-4*s})")
            for i in range(16): a(f"v_add_f32 {V(keep+16*xb+i)}, {V(keep+16*xb+i)}, {V(rb+16*s+i)}")
        if xb < 2: rd(xb+1)
        gelu_inplace(a, [keep+16*xb+i for i in range(16)], tmp)
        for hf in range(2):
            for i in range(4): a(f"v_cvt_pk_bf16_f32 {V(pk+4*hf+i)}, {V(keep+16*xb+8*hf+2*i)}, {V(keep+16*xb+8*hf+2*i+1)}")
            a(f"buffer_store_dwordx4 {V(pk+4*hf,4)}, {V(vX)}, {S(sWS,4)}, {S(sT1 if hf else sT0)} offen offset:{xb*1024}")
    prof_end(a, 1)
    a(f"{Lend}:\ns_endpgm")
    return dict(name=name, grid=216, block=256, lds=G1_LDS, desc=kernel_desc(name, va.hi, 144, 64))

G2_REG = 18432
G2_LDS = 4 * G2_REG
def reduce4_96x64(a, va, accv, sWave, sM0, vL16, sT0, reg_bytes, mid=None):
    wa = va.alloc(); ra = va.alloc(3); rb = va.alloc(72, 4)
    a(f"v_add_u32 {V(wa)}, {S(sM0)}, {V(vL16)}")
    for s in range(1, 4):
        a(f"s_xor_b32 {S(sT0)}, {S(sWave)}, {s}\ns_mul_i32 {S(sT0)}, {S(sT0)}, {reg_bytes}\ns_add_u32 {S(sT0)}, {S(sT0)}, {(s-1)*6144}")
        a(f"v_add_u32 {V(ra+s-1)}, {S(sT0)}, {V(vL16)}")
    for s in range(1, 4):
        b2, hf = s & 1, s >> 1
        for b3 in range(3):
            for q in range(2):
                a(f"ds_write_b128 {V(wa)}, {V(accv(b3,b2) + 8*hf + 4*q, 4)} offset:{(s-1)*6144 + (2*b3+q)*1024}")
    if mid: mid()
    a("s_waitcnt lgkmcnt(0)\ns_barrier")
    stamp(a, 9)
    for s in range(3):
        if s == 2: a("s_waitcnt lgkmcnt(6)")
        for i in range(6): a(f"ds_read_b128 {V(rb+24*s+4*i,4)}, {V(ra+s)} offset:{i*1024}")
    for s in range(3):
        a(f"s_waitcnt lgkmcnt({12-6*s})")
        for b3 in range(3):
            for i in range(8): a(f"v_add_f32 {V(accv(b3,0)+i)}, {V(accv(b3,0)+i)}, {V(rb+24*s+8*b3+i)}")

def body_gemm2(a, va, sid, ldsbase=0):
    sW, sB, sWS = 4, 8, 16
    sWave, sSt, sDt, sXoff, sWoff, sM0, sCnt, sT0, sT1, sT2 = range(20, 30)
    stamp(a, 0)
    for r, n in ((sW, "w2"), (sB, "b2"), (sWS, "ws")): load_srd(a, r, n, 0)
    lane, hh, l31, t = common_setup(a, va, sWave)
    a(f"s_lshr_b32 {S(sT0)}, {S(sid)}, 3\ns_mul_i32 {S(sT1)}, {S(sT0)}, 43\ns_lshr_b32 {S(sT1)}, {S(sT1)}, 8")
    for x in range(24): assert (x*43) >> 8 == x // 6
    a(f"s_mul_i32 {S(sT2)}, {S(sT1)}, 6\ns_sub_u32 {S(sDt)}, {S(sT0)}, {S(sT2)}")
    a(f"s_and_b32 {S(sSt)}, {S(sid)}, 7\ns_lshl_b32 {S(sSt)}, {S(sSt)}, 2\ns_add_u32 {S(sSt)}, {S(sSt)}, {S(sT1)}")
    a(f"s_lshl_b32 {S(sT0)}, {S(sDt)}, 2\ns_add_u32 {S(sT0)}, {S(sT0)}, {S(sWave)}\ns_mul_i32 {S(sXoff)}, {S(sT0)}, {72*3072}\ns_add_u32 {S(sXoff)}, {S(sXoff)}, {WS_U}")
    a(f"s_mul_i32 {S(sWoff)}, {S(sWave)}, {1152*4096}\ns_lshl_b32 {S(sT0)}, {S(sSt)}, 7\ns_add_u32 {S(sWoff)}, {S(sWoff)}, {S(sT0)}")
    a(f"s_mul_i32 {S(sM0)}, {S(sWave)}, {G2_REG}")
    vL = va.alloc(); vX = va.alloc(); vWs = va.alloc(); vWr = va.alloc(2); b2r = va.alloc(); gg = va.alloc(2, 2)
    a(f"v_lshlrev_b32 {V(vL)}, 4, {V(lane)}")
    a(f"s_lshr_b32 {S(sT0)}, {S(sWave)}, 1\ns_lshl_b32 {S(sT0)}, {S(sT0)}, 8\nv_xor_b32 {V(vX)}, {S(sT0)}, {V(vL)}")
    a(f"v_lshrrev_b32 {V(t)}, 3, {V(lane)}\nv_bfe_u32 {V(t+1)}, {V(lane)}, 4, 1\nv_lshlrev_b32 {V(t+1)}, 2, {V(t+1)}\nv_and_b32 {V(t+2)}, 7, {V(lane)}\nv_xor_b32 {V(t+1)}, {V(t+1)}, {V(t+2)}")
    a(f"v_lshlrev_b32 {V(t)}, 12, {V(t)}\nv_lshl_add_u32 {V(vWs)}, {V(t+1)}, 4, {V(t)}")
    a(f"v_bfe_u32 {V(t)}, {V(lane)}, 2, 2\nv_lshl_add_u32 {V(t+1)}, {V(hh)}, 2, {V(t)}\nv_lshlrev_b32 {V(t+1)}, 7, {V(t+1)}")
    a(f"v_bfe_u32 {V(t+2)}, {V(lane)}, 4, 1\nv_lshl_add_u32 {V(t+1)}, {V(t+2)}, 5, {V(t+1)}")
    a(f"v_and_b32 {V(t+2)}, 3, {V(lane)}\nv_lshl_add_u32 {V(t+1)}, {V(t+2)}, 3, {V(t+1)}\nv_add_u32 {V(t+1)}, {S(sM0)}, {V(t+1)}")
    a(f"s_and_b32 {S(sT0)}, {S(sWave)}, 1\nv_lshrrev_b32 {V(t)}, 1, {V(t)}\nv_xor_b32 {V(t)}, {S(sT0)}, {V(t)}")
    for b in range(2): a(f"v_xor_b32 {V(t+2)}, {b}, {V(t)}\nv_lshl_add_u32 {V(vWr+b)}, {V(t+2)}, 6, {V(t+1)}")
    a("s_waitcnt lgkmcnt(0)")
    for r, n in ((sW, "w2"), (sB, "b2"), (sWS, "ws")): fin_srd(a, r, n)
    vm = VmTrack()
    a(f"s_lshl_b32 {S(sT1)}, {S(sSt)}, 6\ns_lshl_b32 {S(sT0)}, {S(sT0)}, 5\ns_add_u32 {S(sT0)}, {S(sT0)}, {S(sT1)}\nv_add_u32 {V(t)}, {S(sT0)}, {V(l31)}")
    a(f"v_lshlrev_b32 {V(t+1)}, 1, {V(t)}\nv_lshlrev_b32 {V(t+2)}, 3, {V(t)}\ns_mov_b32 {S(sT0)}, {WS_G}")
    a(f"buffer_load_ushort {V(b2r)}, {V(t+1)}, {S(sB,4)}, 0 offen")
    a(f"buffer_load_dwordx2 {V(gg,2)}, {V(t+2)}, {S(sWS,4)}, {S(sT0)} offen")
    accb = va.alloc(96, 4)
    def accv(xb, wb): return accb + 16*(3*wb + xb)
    def mid():
        for i in range(96): a(f"v_mov_b32 {V(accb+i)}, 0")
    mk = va.mark()
    pgemm_loop(a, va, dict(nX=3, nW=2, NS=72, N=CFG['N2'], acc=lambda xb, wb: ("v", accv(xb, wb)), x_first=True, sXsrd=sWS, sWsrd=sW, sXoff=sXoff,
        sWoff=sWoff, sM0=sM0, vXoff=vX, vWsrc=vWs, vWrd=vWr, wrow=8*4096, rd2=1024, sCnt=sCnt, vm=vm, mid=mid, tailgap=2))
    va.release(mk)
    reduce4_96x64(a, va, accv, sWave, sM0, vL, sT0, G2_REG)
    pk = va.alloc(4, 4)
    a(f"s_mul_i32 {S(sT0)}, {S(sSt)}, 6\ns_add_u32 {S(sT0)}, {S(sT0)}, {S(sDt)}\ns_lshl_b32 {S(sT0)}, {S(sT0)}, 2\ns_add_u32 {S(sT0)}, {S(sT0)}, {S(sWave)}")
    a(f"s_mul_i32 {S(sT0)}, {S(sT0)}, 3072\ns_add_u32 {S(sT0)}, {S(sT0)}, {WS_T}")
    a(f"v_lshlrev_b32 {V(b2r)}, 16, {V(b2r)}")
    for xb in range(3):
        b = accv(xb, 0)
        for i in range(4):
            r0, r1 = b+2*i, b+2*i+1
            a(f"v_cvt_pk_bf16_f32 {V(t)}, {V(r0)}, {V(r1)}")
            a(f"v_lshlrev_b32 {V(r0)}, 16, {V(t)}\nv_and_b32 {V(r1)}, 0xffff0000, {V(t)}")
            a(f"v_add_f32 {V(r0)}, {V(r0)}, {V(b2r)}\nv_add_f32 {V(r1)}, {V(r1)}, {V(b2r)}")
            a(f"v_cvt_pk_bf16_f32 {V(t)}, {V(r0)}, {V(r1)}")
            a(f"v_lshlrev_b32 {V(r0)}, 16, {V(t)}\nv_and_b32 {V(r1)}, 0xffff0000, {V(t)}")
            a(f"v_mul_f32 {V(r0)}, {V(r0)}, {V(gg+1)}\nv_mul_f32 {V(r1)}, {V(r1)}, {V(gg+1)}")
            a(f"v_cvt_pk_bf16_f32 {V(b+8+i)}, {V(r0)}, {V(r1)}")
        a(f"buffer_store_dwordx4 {V(b+8,4)}, {V(vL)}, {S(sWS,4)}, {S(sT0)} offen offset:{xb*1024}")
    prof_end(a, 3)
    a("s_endpgm")

def gen_gemm2(a, name="gemm2_kernel"):
    va = RegAlloc("v", 1, 256)
    kernel_begin(a, name)
    Lend = a.label("G2END")
    a(f"s_cmp_ge_u32 s2, 192\ns_cbranch_scc1 {Lend}")
    body_gemm2(a, va, 2)
    a(f"{Lend}:\ns_endpgm")
    return dict(name=name, grid=192, block=256, lds=G2_LDS, desc=kernel_desc(name, va.hi, 0, 64))

OUT_REG = 27648
OUT_LDS = 4 * OUT_REG
def gen_out(a, name="outp_kernel"):
    va = RegAlloc("v", 1, 256)
    kernel_begin(a, name)
    Lend = a.label("OEND")
    sW, sO, sWS = 4, 8, 16
    sWave, sSt, sDt, sXoff, sWoff, sM0, sCnt, sT0, sT1, sT2, sX1 = range(20, 31)
    sid = 2
    a(f"s_cmp_ge_u32 s2, 192\ns_cbranch_scc1 {Lend}")
    stamp(a, 0)
    for r, n in ((sW, "wo"), (sO, "out"), (sWS, "ws")): load_srd(a, r, n, 0)
    lane, hh, l31, t = common_setup(a, va, sWave)
    a(f"s_lshr_b32 {S(sT0)}, {S(sid)}, 3\ns_mul_i32 {S(sT1)}, {S(sT0)}, 43\ns_lshr_b32 {S(sT1)}, {S(sT1)}, 8")
    a(f"s_mul_i32 {S(sT2)}, {S(sT1)}, 6\ns_sub_u32 {S(sDt)}, {S(sT0)}, {S(sT2)}")
    a(f"s_and_b32 {S(sSt)}, {S(sid)}, 7\ns_lshl_b32 {S(sSt)}, {S(sSt)}, 2\ns_add_u32 {S(sSt)}, {S(sSt)}, {S(sT1)}")
    a(f"s_and_b32 {S(sT2)}, {S(sWave)}, 1\ns_lshl_b32 {S(sT0)}, {S(sSt)}, 1\ns_add_u32 {S(sT0)}, {S(sT0)}, {S(sT2)}")
    a(f"s_mul_i32 {S(sT1)}, {S(sWave)}, {9*1024}\ns_add_u32 {S(sT1)}, {S(sT1)}, {WS_OF}")
    a(f"s_mul_i32 {S(sXoff)}, {S(sT0)}, {36*1024}\ns_add_u32 {S(sXoff)}, {S(sXoff)}, {S(sT1)}")
    a(f"s_xor_b32 {S(sT0)}, {S(sT0)}, 1\ns_mul_i32 {S(sX1)}, {S(sT0)}, {36*1024}\ns_add_u32 {S(sX1)}, {S(sX1)}, {S(sT1)}")
    a(f"s_mul_i32 {S(sWoff)}, {S(sWave)}, {144*1152}\ns_mul_i32 {S(sT0)}, {S(sDt)}, 192\ns_add_u32 {S(sWoff)}, {S(sWoff)}, {S(sT0)}")
    a(f"s_mul_i32 {S(sM0)}, {S(sWave)}, {OUT_REG}")
    vL = va.alloc(); vWs = va.alloc(3); vWm = va.alloc(); vWt = va.alloc(); gg = va.alloc(2, 2); tin = va.alloc(12, 4); vO = va.alloc()
    a(f"v_lshlrev_b32 {V(vL)}, 4, {V(lane)}")
    for i in range(3):
        a(f"v_add_u32 {V(t)}, {64*i}, {V(lane)}\nv_mul_u32_u24 {V(t+1)}, 171, {V(t)}\nv_lshrrev_b32 {V(t+1)}, 11, {V(t+1)}")
        a(f"v_mul_u32_u24 {V(t+2)}, 12, {V(t+1)}\nv_sub_u32 {V(t+2)}, {V(t)}, {V(t+2)}\nv_mul_u32_u24 {V(t+1)}, 1152, {V(t+1)}")
        a(f"v_lshl_add_u32 {V(vWs+i)}, {V(t+2)}, 4, {V(t+1)}")
    for x in range(192): assert (x*171) >> 11 == x // 12
    a(f"s_lshr_b32 {S(sT0)}, {S(sWave)}, 1\nv_bfe_u32 {V(t+2)}, {V(lane)}, 4, 1\nv_xor_b32 {V(t+2)}, {S(sT0)}, {V(t+2)}\nv_lshlrev_b32 {V(t+1)}, 5, {V(t+2)}")
    a(f"v_and_b32 {V(t+2)}, 3, {V(lane)}\nv_lshl_add_u32 {V(t+1)}, {V(t+2)}, 3, {V(t+1)}\nv_add_u32 {V(t+1)}, {S(sM0)}, {V(t+1)}")
    a(f"v_bfe_u32 {V(t)}, {V(lane)}, 2, 2")
    a(f"v_lshl_add_u32 {V(t+2)}, {V(hh)}, 2, {V(t)}\nv_mul_u32_u24 {V(t+2)}, 192, {V(t+2)}\nv_add_u32 {V(vWm)}, {V(t+2)}, {V(t+1)}")
    a(f"v_lshrrev_b32 {V(t+2)}, 1, {V(t)}\nv_lshl_add_u32 {V(t+2)}, {V(hh)}, 2, {V(t+2)}\nv_mul_u32_u24 {V(t+2)}, 18, {V(t+2)}")
    a(f"v_and_b32 {V(t)}, 1, {V(t)}\nv_add3_u32 {V(t+2)}, {V(t+2)}, {V(t)}, 16\nv_mul_u32_u24 {V(t+2)}, 192, {V(t+2)}\nv_add_u32 {V(vWt)}, {V(t+2)}, {V(t+1)}")
    a("s_waitcnt lgkmcnt(0)")
    for r, n in ((sW, "wo"), (sO, "out"), (sWS, "ws")): fin_srd(a, r, n)
    vm = VmTrack()
    accb = va.alloc(96, 4)
    mk = va.mark()
    xr = va.alloc(72, 4); wf = va.alloc(24, 4)
    def accv(b3, b2): return accb + 16*(3*b2 + b3)
    for g in range(9):
        for i in range(3):
            a(f"s_add_u32 m0, {S(sM0)}, {(3*g+i)*1024}")
            a(f"buffer_load_dwordx4 {V(vWs+i)}, {S(sW,4)}, {S(sWoff)} offen lds"); vm.issue(f"W{g}")
        a(f"s_add_u32 {S(sWoff)}, {S(sWoff)}, {16*1152}")
        a(f"buffer_load_dwordx4 {V(xr+8*g,4)}, {V(vL)}, {S(sWS,4)}, {S(sXoff)} offen")
        a(f"buffer_load_dwordx4 {V(xr+8*g+4,4)}, {V(vL)}, {S(sWS,4)}, {S(sX1)} offen"); vm.issue(f"X{g}", 2)
        a(f"s_add_u32 {S(sXoff)}, {S(sXoff)}, 1024\ns_add_u32 {S(sX1)}, {S(sX1)}, 1024")
    a(f"s_mul_i32 {S(sT0)}, {S(sSt)}, 6\ns_add_u32 {S(sT0)}, {S(sT0)}, {S(sDt)}\ns_lshl_b32 {S(sT0)}, {S(sT0)}, 2\ns_add_u32 {S(sT0)}, {S(sT0)}, {S(sWave)}")
    a(f"s_mul_i32 {S(sT0)}, {S(sT0)}, 3072\ns_add_u32 {S(sT0)}, {S(sT0)}, {WS_T}")
    for b3 in range(3): a(f"buffer_load_dwordx4 {V(tin+4*b3,4)}, {V(vL)}, {S(sWS,4)}, {S(sT0)} offen offset:{b3*1024}"); vm.issue("T")
    a(f"s_lshl_b32 {S(sT1)}, {S(sSt)}, 6\ns_lshl_b32 {S(sT0)}, {S(sT2)}, 5\ns_add_u32 {S(sT0)}, {S(sT0)}, {S(sT1)}\nv_add_u32 {V(t)}, {S(sT0)}, {V(l31)}")
    a(f"v_lshlrev_b32 {V(t+2)}, 3, {V(t)}\ns_mov_b32 {S(sT0)}, {WS_G}")
    a(f"buffer_load_dwordx2 {V(gg,2)}, {V(t+2)}, {S(sWS,4)}, {S(sT0)} offen"); vm.issue("T")
    a(f"v_mul_u32_u24 {V(vO)}, 1152, {V(t)}\nv_lshl_add_u32 {V(vO)}, {V(hh)}, 4, {V(vO)}")
    def rd(k):
        for b3 in range(3):
            d = wf + 12*(k % 2) + 4*b3
            if k < 8:
                off = 18*k*192 + b3*64
                a(f"ds_read_b64_tr_b16 {V(d,2)}, {V(vWm)} offset:{off}\nds_read_b64_tr_b16 {V(d+2,2)}, {V(vWm)} offset:{off + 8*192}")
            else:
                a(f"ds_read_b64_tr_b16 {V(d,2)}, {V(vWt)} offset:{b3*64}\nds_read_b64_tr_b16 {V(d+2,2)}, {V(vWt)} offset:{b3*64 + 36*192}")
    def need_g(k): return min(8, (18*k + 15) // 16) if k < 8 else 8
    done = -1
    def waitg(g):
        nonlocal done
        if g > done:
            a(f"s_waitcnt vmcnt({vm.wait(f'X{g}')})"); done = g
    stamp(a, 1)
    waitg(need_g(0))
    stamp(a, 2)
    rd(0)
    for k in range(9):
        if k < 8:
            waitg(max(need_g(k+1), k+1)); rd(k+1)
            a("s_waitcnt lgkmcnt(6)")
        else:
            a("s_waitcnt lgkmcnt(0)")
        for b2 in range(2):
            for b3 in range(3):
                a(mfma(accv(b3, b2), wf + 12*(k % 2) + 4*b3, xr + 8*k + 4*b2, "0" if k == 0 else None))
    va.release(mk)
    stamp(a, 4)
    reduce4_96x64(a, va, accv, sWave, sM0, vL, sT0, OUT_REG)
    a(f"s_mul_i32 {S(sT0)}, {S(sDt)}, 192\ns_lshr_b32 {S(sT1)}, {S(sWave)}, 1\ns_lshl_b32 {S(sT1)}, {S(sT1)}, 5\ns_add_u32 {S(sT0)}, {S(sT0)}, {S(sT1)}")
    a("s_waitcnt vmcnt(0)")
    for b3 in range(3):
        b = accv(b3, 0)
        for i in range(4):
            r0, r1 = b+2*i, b+2*i+1
            a(f"v_cvt_pk_bf16_f32 {V(t)}, {V(r0)}, {V(r1)}")
            a(f"v_lshlrev_b32 {V(r0)}, 16, {V(t)}\nv_and_b32 {V(r1)}, 0xffff0000, {V(t)}")
            a(f"v_mul_f32 {V(r0)}, {V(r0)}, {V(gg)}\nv_mul_f32 {V(r1)}, {V(r1)}, {V(gg)}")
            a(f"v_cvt_pk_bf16_f32 {V(t)}, {V(r0)}, {V(r1)}")
            a(f"v_lshlrev_b32 {V(r0)}, 16, {V(t)}\nv_and_b32 {V(r1)}, 0xffff0000, {V(t)}")
            a(f"v_lshlrev_b32 {V(t+1)}, 16, {V(tin+4*b3+i)}\nv_and_b32 {V(t+2)}, 0xffff0000, {V(tin+4*b3+i)}")
            a(f"v_add_f32 {V(r0)}, {V(r0)}, {V(t+1)}\nv_add_f32 {V(r1)}, {V(r1)}, {V(t+2)}")
            a(f"v_cvt_pk_bf16_f32 {V(b+8+i)}, {V(r0)}, {V(r1)}")
        a(f"v_permlane32_swap_b32 {V(b+8)}, {V(b+10)}\nv_permlane32_swap_b32 {V(b+9)}, {V(b+11)}")
        a(f"buffer_store_dwordx4 {V(b+8,4)}, {V(vO)}, {S(sO,4)}, {S(sT0)} offen offset:{b3*64}")
    prof_end(a, 4)
    a(f"{Lend}:\ns_endpgm")
    return dict(name=name, grid=192, block=256, lds=OUT_LDS, desc=kernel_desc(name, va.hi, 0, 64))
```

```python
import sys
from m_common import *
from m_qkv import body_qkv
from m_ln import body_ln, body_gate
from m_g1 import *
from m_g2 import *
from m_attn import body_attn
from gen import build

def w1_touch(a, d, sN, flag):
    a(f"s_mul_i32 s21, {S(sN)}, 205\ns_lshr_b32 s21, s21, 10\ns_mul_i32 s22, s21, 5\ns_sub_u32 s22, {S(sN)}, s22\ns_lshl_b32 s22, s22, 8")
    a(f"s_mul_i32 s21, s21, {32*9216}\ns_add_u32 s21, s21, s22\ns_add_u32 s21, s21, s24")
    a(f"buffer_load_dword {V(d)}, {V(vT)}, s[4:7], s21 offen{flag}")
    for x in range(340): assert (x*205) >> 10 == x // 5
def w1_touch_setup(a):
    srd(a, 4, "w1")
    a(f"s_and_b32 s24, s2, 7\ns_mul_i32 s24, s24, 9\ns_lshr_b32 s24, s24, 1\ns_lshl_b32 s24, s24, 8")
    a(f"v_lshrrev_b32 {V(vT)}, 1, {V(vLane)}\nv_mul_u32_u24 {V(vT)}, 9216, {V(vT)}\nv_and_b32 {V(vT+1)}, 1, {V(vLane)}\nv_lshl_add_u32 {V(vT)}, {V(vT+1)}, 7, {V(vT)}")

def w1_first(a):
    a("s_waitcnt lgkmcnt(0)")
    w1_touch_setup(a)
    a(f"s_lshr_b32 s25, s26, 3\ns_lshl_b32 s25, s25, 2\ns_add_u32 s25, s25, {S(sWave)}")
    for r in range(CFG["pf_first"]):
        w1_touch(a, V0FREE, 25, "")
        a("s_add_u32 s25, s25, 32")

def helper(a, d):
    sT0, sT1, sI, sN = 21, 22, 23, 25
    t = vT
    a(f"s_sub_u32 {S(sI)}, s2, 216\ns_lshr_b32 {S(sI)}, {S(sI)}, 3\ns_lshl_b32 {S(sI)}, {S(sI)}, 2\ns_add_u32 {S(sI)}, {S(sI)}, {S(sWave)}")
    if CFG["pf_w1"]:
        w1_touch_setup(a)
        n0 = 32 * CFG["pf_w1"]
        for r in range((320 - n0 + 19) // 20):
            a(f"s_add_u32 {S(sN)}, {S(sI)}, {n0 + 20*r}")
            w1_touch(a, d, sN, "")
            a(f"s_waitcnt vmcnt({CFG['pfw']})")
    stamp(a, 3)
    srd(a, 4, "w2"); srd(a, 8, "wo")
    a(f"s_and_b32 {S(sT0)}, {S(sI)}, 3\ns_mul_i32 {S(sT0)}, {S(sT0)}, {1152*4096}\ns_lshr_b32 {S(sT1)}, {S(sI)}, 2\ns_lshl_b32 {S(sT1)}, {S(sT1)}, 16\ns_add_u32 {S(sT0)}, {S(sT0)}, {S(sT1)}")
    a(f"s_and_b32 {S(sT1)}, s2, 7\ns_lshl_b32 {S(sT1)}, {S(sT1)}, 9\ns_add_u32 {S(sT0)}, {S(sT0)}, {S(sT1)}")
    a(f"v_lshrrev_b32 {V(t)}, 2, {V(vLane)}\nv_lshlrev_b32 {V(t)}, 12, {V(t)}\nv_and_b32 {V(t+1)}, 3, {V(vLane)}\nv_lshl_add_u32 {V(t)}, {V(t+1)}, 7, {V(t)}")
    for r in range(15 if CFG["pf_w2"] else 0):
        a(f"buffer_load_dword {V(d)}, {V(t)}, s[4:7], {S(sT0)} offen\ns_add_u32 {S(sT0)}, {S(sT0)}, {5*65536}\ns_waitcnt vmcnt({CFG['pfw']})")
    a(f"s_lshl_b32 {S(sT0)}, {S(sI)}, 13\nv_lshlrev_b32 {V(t)}, 7, {V(vLane)}")
    for r in range(5 if CFG["pf_wo"] else 0):
        a(f"buffer_load_dword {V(d)}, {V(t)}, s[8:11], {S(sT0)} offen\ns_add_u32 {S(sT0)}, {S(sT0)}, {20*8192}\ns_waitcnt vmcnt({CFG['pfw']})")

def kern(a, name, phases, kidx):
    kernel_begin(a, name)
    Lend = a.label("END"); LA = a.label("ROLEA"); Lln = a.label("LN"); Lg1 = a.label("G1"); Latt = a.label("ATT0"); Lhelp = a.label("HELP"); Lfin = a.label("FIN")
    Lnog2 = a.label("NOG2")
    hi = 0
    grid = 512 if phases != [3] else 256
    a(f"s_cmp_ge_u32 s2, {grid}\ns_cbranch_scc1 {Lend}")
    entry(a)
    a("s_lshr_b32 s3, s2, 8\ns_and_b32 s2, s2, 255\ns_setprio 3")
    pd = V0FREE
    if 1 not in phases:
        a("s_waitcnt lgkmcnt(0)"); entry_fin(a)
    if phases != [3]: a(f"s_cmp_eq_u32 s3, 1\ns_cbranch_scc1 {LA}")
    if 1 in phases: a(f"s_cmp_ge_u32 s2, 192\ns_cbranch_scc1 {Lln}")
    va = RegAlloc("v", V0FREE+1, 254); vm = VmTrack(); R1 = {}; R2 = {}
    mk = va.mark()
    if 1 in phases:
        a("s_waitcnt lgkmcnt(0)"); entry_fin(a)
    elif 2 in phases: a(f"s_cmp_ge_u32 s2, 216\ns_cbranch_scc1 {Lhelp}")
    if 2 in phases:
        a(f"{Lg1}:")
        g1_alloc(va, R1)
        srd(a, 4, "w1"); srd(a, 8, "b1")
        g1_setup(a, va, R1)
        if 1 in phases:
            poll_f0(a, R1["sT1"]); a("s_barrier")
            stamp(a, 2)
        g1_prologue_w(a, R1, vm)
        g1_main(a, va, R1, vm)
        a("s_barrier")
        g1_epilogue(a, va, R1, vm)
        stamp(a, 5)
        va.release(mk)
    if 3 in phases:
        srd(a, 4, "w2"); srd(a, 8, "wo"); srd(a, 44, "b2"); srd(a, 48, "out")
        a(f"s_cmp_ge_u32 s2, 192\ns_cbranch_scc1 {Lnog2}")
        g2_setup(a, va, R2, vm)
        if 2 in phases: signal(a, sWS, "s34", 9, vm.wait("ust"))
        g2_main(a, va, R2, vm)
    a(f"{Lfin}:")
    prof_end(a, kidx)
    a("s_endpgm")
    if R2.get("tailcode"): R2["tailcode"]()
    if 3 in phases:
        a(f"{Lnog2}:")
        if 2 in phases: signal(a, sWS, "s34", 9)
        a(f"s_branch {Lfin}")
    hi = max(hi, va.hi)
    if 1 in phases:
        a(f"{Lln}:")
        va = RegAlloc("v", V0FREE+1, 254)
        a("s_sub_u32 s26, s2, 192")
        body_ln(a, va, 26)
        hi = max(hi, va.hi)
        if 2 in phases: a(f"s_cmp_lt_u32 s2, 216\ns_cbranch_scc1 {Lg1}")
        else: a(f"s_branch {Lfin}")
    if 2 in phases:
        a(f"{Lhelp}:")
        helper(a, pd)
        a(f"s_branch {Lfin}")
    if phases != [3]:
        a(f"{LA}:")
        if 1 in phases:
            va = RegAlloc("v", V0FREE, 254)
            Lq = a.label("QKV")
            a(f"s_cmp_lt_u32 s2, 192\ns_cbranch_scc1 {Lq}\ns_sub_u32 s26, s2, 192\ns_setprio 1")
            va.alloc()
            if CFG["pf_first"]: w1_first(a)
            body_gate(a, va, 26)
            stamp(a, 1)
            if CFG["pf_w1"]:
                w1_touch_setup(a)
                a(f"s_lshr_b32 s25, s26, 3\ns_lshl_b32 s25, s25, 2\ns_add_u32 s25, s25, {S(sWave)}\ns_add_u32 s25, s25, {32*CFG['pf_first']}")
                for r in range(CFG["pf_first"], CFG["pf_w1"]):
                    w1_touch(a, pd, 25, "")
                    a(f"s_add_u32 s25, s25, 32\ns_waitcnt vmcnt({CFG['pfwa']})")
            stamp(a, 2)
            poll_f0(a, 22)
            a(f"s_mov_b32 s21, {WS_FL + FG_G*256}")
            signal(a, sWS, "s21", 64)
            a(f"s_branch {Latt}\n{Lq}:\ns_setprio {CFG['prio_q']}")
            body_qkv(a, va)
            hi = max(hi, va.hi)
        a(f"{Latt}:")
        a(f"s_setprio {CFG['prio_att']}")
        if 2 in phases and not CFG['noatt']:
            va = RegAlloc("v", V0FREE, 254)
            body_attn(a, va, kidx)
            hi = max(hi, va.hi)
        else:
            a(f"s_branch {Lfin}")
    a(f"{Lend}:\ns_endpgm")
    return dict(name=name, grid=grid, block=256, lds=LDS_BYTES, desc=kernel_desc(name, max(hi, 136), 0, 96))

if __name__ == "__main__":
    path = "gated_mix__softmax_full_mha__mixer_token_mlp__prompt.s"
    CFG.update(prio_att=1, prio_q=3, pf_w1=5, pf_first=0, pfwa=0, pf_w2=1, pf_wo=1, pfw=0, rot=1, rot1=0, win1=0, rot2=0, win2=0, noatt=0, nt_w1=0, prio_g1=2, prio_g2=0)
    for arg in sys.argv[1:]:
        if "=" in arg:
            k, v = arg.split("=")
            if k == "out": path = v
            else: CFG[k] = int(v)
    if "--prof" in sys.argv: prof_enable()
    if CFG.get("multi"):
        MODE["mega"] = False
        build([lambda a: kern(a, "ph1_kernel", [1], 0), lambda a: kern(a, "ph2_kernel", [2], 1), lambda a: kern(a, "ph3_kernel", [3], 2)], path)
    else:
        build([lambda a: kern(a, "mega_kernel", [1, 2, 3], 0)], path)
```

```python
import sys
from common import *
from k1_lnqkv import gen_k1
from pgemm import gen_gemm1, gen_gemm2, gen_out
from attn import gen_attn

HDR = open("gated_mix__softmax_full_mha__mixer_token_mlp__prompt.s.ref").read().split("; Override launch")[0]

def build(gens, path):
    a = Asm()
    ks = [g(a) for g in gens]
    n = a.fix_hazards(verbose="-v" in sys.argv)
    out = HDR
    if len(ks) == 1 and ks[0]["name"].startswith("gated"):
        k = ks[0]; out += f"; @launch grid=({k['grid']},1,1) block=({k['block']},1,1) lds={k['lds']}\n"
    else:
      for k in ks: out += f"; @launch kernel={k['name']} grid=({k['grid']},1,1) block=({k['block']},1,1) lds={k['lds']}\n"
    out += '.amdgcn_target "amdgcn-amd-amdhsa--gfx950"\n.text\n' + a.text()
    out += '.section .rodata,"a"\n' + "\n".join(k["desc"] for k in ks) + "\n"
    open(path, "w").write(out)
    print("wrote", path, len(out), "bytes; nops inserted:", n)
    for k in ks: print(" ", k["name"], [l.strip() for l in k["desc"].split("\n") if "vgpr" in l or "accum" in l], "lds", k["lds"])

if __name__ == "__main__":
    from attn import gen_fused
    path = "gated_mix__softmax_full_mha__mixer_token_mlp__prompt.s"
    for arg in sys.argv[1:]:
        if "=" in arg:
            k, v = arg.split("=")
            if k == "out": path = v
            else: CFG[k] = int(v)
    if "--prof" in sys.argv: prof_enable()
    fused = lambda a: gen_fused(a, att_first=CFG["att_first"], prio_att=CFG["prio_att"], prio_g=CFG["prio_g"])
    if CFG.get('unfused'): build([gen_k1, gen_gemm1, gen_attn, gen_gemm2, gen_out], path)
    else: build([gen_k1, gen_gemm1, fused, gen_out], path)
```

```python
from m_common import *

ATT_BUF = 20480
ATT_LDS = 4 * ATT_BUF

def body_attn(a, va, kidx):
    sid = 2
    NQ = 2
    sHead, sQg, sKV, sSrc, sM0, sCnt, sT0, sT1, sT2, sKb, sVb, sDb, sFlag, sTb = range(21, 35)
    lane, hh, l31, t = vLane, vH, vL31, vT
    a(f"s_and_b32 {S(sHead)}, {S(sid)}, 7\ns_lshl_b32 {S(sHead)}, {S(sHead)}, 2\ns_lshr_b32 {S(sT0)}, {S(sid)}, 6\ns_add_u32 {S(sHead)}, {S(sHead)}, {S(sT0)}")
    a(f"s_bfe_u32 {S(sQg)}, {S(sid)}, 0x30003")
    a(f"s_lshl_b32 {S(sTb)}, {S(sQg)}, 3\ns_lshl_b32 {S(sT0)}, {S(sWave)}, 1\ns_add_u32 {S(sTb)}, {S(sTb)}, {S(sT0)}")
    a(f"s_mul_i32 {S(sKV)}, {S(sHead)}, {KVH}\ns_add_u32 {S(sKV)}, {S(sKV)}, {WS_KV}")
    a(f"s_mul_i32 {S(sM0)}, {S(sWave)}, 5120\ns_add_u32 {S(sSrc)}, {S(sKV)}, {S(sM0)}")
    gq = va.alloc(2); vK0t = va.alloc(); vV0 = va.alloc(); vK = va.alloc(); vKt = va.alloc(); vV = va.alloc(); vQt = va.alloc(); msk = va.alloc()
    Qm = va.alloc(4*NQ, 4); Qt = va.alloc(4*NQ, 4); O = va.alloc(16*NQ, 4); Sb = va.alloc(32, 4); P = va.alloc(8, 4)
    Km = va.alloc(4, 4); Kt = va.alloc(4, 4); V0 = va.alloc(4, 4); V1 = va.alloc(4, 4); mx = va.alloc(2)
    a(f"v_lshlrev_b32 {V(vK0t)}, 2, {V(l31)}")
    a(f"v_cmp_gt_u32 vcc, 32, {V(lane)}\nv_mov_b32 {V(t)}, {OOB}\nv_cndmask_b32 {V(vQt)}, {V(t)}, {V(vK0t)}, vcc\nv_cndmask_b32 {V(msk)}, 0, -1, vcc")
    a(f"v_add_u32 {V(vK0t)}, 8192, {V(vK0t)}")
    a(f"s_and_b32 {S(sT0)}, {S(sHead)}, 1\ns_lshl_b32 {S(sT0)}, {S(sT0)}, 1\nv_subrev_u32 {V(t)}, {S(sT0)}, {V(l31)}")
    a(f"v_lshlrev_b32 {V(t+1)}, 8, {V(hh)}\nv_lshl_add_u32 {V(vV0)}, {V(t)}, 4, {V(t+1)}")
    a(f"v_and_b32 {V(t+2)}, 1, {V(l31)}\nv_cmp_lt_u32 vcc, 17, {V(l31)}\nv_cndmask_b32 {V(t+2)}, {V(t+2)}, 3, vcc")
    a(f"v_and_b32 {V(t+3)}, 27, {V(l31)}\nv_cmp_eq_u32 vcc, 18, {V(t+3)}\nv_cndmask_b32 {V(t+2)}, {V(t+2)}, 2, vcc")
    a(f"v_lshlrev_b32 {V(t+1)}, 6, {V(hh)}\nv_lshl_add_u32 {V(t+2)}, {V(t+2)}, 4, {V(t+1)}\nv_add_u32 {V(t+2)}, 512, {V(t+2)}")
    a(f"v_cmp_lt_u32 vcc, 15, {V(t)}\nv_cndmask_b32 {V(vV0)}, {V(vV0)}, {V(t+2)}, vcc\nv_add_u32 {V(vV0)}, 9216, {V(vV0)}")
    for q in range(NQ):
        for i in range(1, 4): a(f"v_mov_b32 {V(Qt+4*q+i)}, 0")
    a(f"v_mov_b32 {V(Kt+1)}, 0x3f803f80\nv_mov_b32 {V(Kt+2)}, 0x3f80\nv_mov_b32 {V(Kt+3)}, 0")
    for i in range(16*NQ): a(f"v_mov_b32 {V(O+i)}, 0")
    for i in range(4): a(f"v_mov_b32 {V(V1+i)}, 0\nv_mov_b32 {V(P+4+i)}, 0")
    a(f"v_mov_b32 {V(vK)}, {V(vL)}\nv_mov_b32 {V(vKt)}, {V(vK0t)}\nv_mov_b32 {V(vV)}, {V(vV0)}")
    a(f"s_mov_b32 {S(sKb)}, 0\ns_mov_b32 {S(sFlag)}, 0")
    if MODE["mega"]:
        Lp = a.label("APOLL")
        a(f"s_cmp_lg_u32 {S(sWave)}, 0\ns_cbranch_scc1 {Lp}")
        a(f"s_lshr_b32 {S(sT0)}, {S(sHead)}, 3\ns_lshl_b32 {S(sT0)}, {S(sT0)}, 8\ns_add_u32 {S(sT0)}, {S(sT0)}, {WS_FL+FQ_G*256}\nv_mov_b32 {V(t)}, 0")
        poll(a, sWS, t, S(sT0), t+1, sT1)
        a(f"{Lp}:\ns_barrier")
        a(f"s_mov_b32 {S(sT0)}, {WS_FL+FG_G*256}\nv_mov_b32 {V(t)}, 0\nbuffer_load_dword {V(gq)}, {V(t)}, {S(sWS,4)}, {S(sT0)} offen offset:128 sc1")
    stamp(a, 3)
    def g_loads():
        a(f"s_lshl_b32 {S(sT0)}, {S(sTb)}, 8\ns_add_u32 {S(sT0)}, {S(sT0)}, {WS_G}\nv_lshlrev_b32 {V(t)}, 3, {V(l31)}")
        for q in range(NQ): a(f"buffer_load_dword {V(gq+q)}, {V(t)}, {S(sWS,4)}, {S(sT0)} offen offset:{q*256}{SC()}")
    a(f"s_lshl_b32 {S(sT0)}, {S(sHead)}, 6\ns_add_u32 {S(sT0)}, {S(sT0)}, {S(sTb)}\ns_lshl_b32 {S(sT1)}, {S(sT0)}, 7\ns_lshl_b32 {S(sT0)}, {S(sT0)}, 10")
    a(f"s_add_u32 {S(sT0)}, {S(sT0)}, {WS_QF}\ns_add_u32 {S(sT1)}, {S(sT1)}, {WS_QT}")
    for q in range(NQ):
        a(f"buffer_load_dwordx4 {V(Qm+4*q,4)}, {V(vL)}, {S(sWS,4)}, {S(sT0)} offen offset:{q*1024}{SC()}")
        a(f"buffer_load_dword {V(Qt+4*q)}, {V(vQt)}, {S(sWS,4)}, {S(sT1)} offen offset:{q*128}{SC()}")
    def dma_piece(i): return f"buffer_load_dwordx4 {V(vL)}, {S(sWS,4)}, {S(sSrc if i < 4 else sT0)} offen offset:{(i % 4)*1024}{SC()} lds"
    def dma_chunk():
        a(f"s_add_u32 m0, {S(sDb)}, {S(sM0)}\ns_add_u32 {S(sT0)}, {S(sSrc)}, 4096")
        for i in range(4): a(dma_piece(i))
        a(f"s_add_u32 m0, m0, 4096\ns_add_u32 {S(sSrc)}, {S(sSrc)}, {KVCH}")
        a(dma_piece(4))
    def wrap(s):
        return [f"s_add_u32 {S(s)}, {S(s)}, {ATT_BUF}", f"s_cmp_eq_u32 {S(s)}, {ATT_LDS}", f"s_cselect_b32 {S(s)}, 0, {S(s)}"]
    a(f"s_mov_b32 {S(sDb)}, 0")
    for c in range(2):
        dma_chunk()
        for x in wrap(sDb): a(x)
    a("s_waitcnt vmcnt(5)\ns_barrier")
    stamp(a, 4)
    if MODE["mega"]: a(f"v_readfirstlane_b32 {S(sVb)}, {V(gq)}")
    g_loads()
    a(f"ds_read_b128 {V(Km,4)}, {V(vK)}\nds_read_b32 {V(Kt)}, {V(vKt)}\nds_read_b128 {V(V0,4)}, {V(vV)}")
    a("s_waitcnt lgkmcnt(1)")
    def smfma(buf, q):
        return mfma(Sb+16*buf, Km, Qm+4*q, "0"), mfma(Sb+16*buf, Kt, Qt+4*q)
    def rowmax(buf, dst, init):
        b = Sb + 16*buf
        if init:
            a(f"v_max3_f32 {V(dst)}, {V(b)}, {V(b+1)}, {V(b+2)}")
            for i in range(3, 15, 2): a(f"v_max3_f32 {V(dst)}, {V(dst)}, {V(b+i)}, {V(b+i+1)}")
            a(f"v_max_f32 {V(dst)}, {V(dst)}, {V(b+15)}")
        else:
            for i in range(0, 16, 2): a(f"v_max3_f32 {V(dst)}, {V(dst)}, {V(b+i)}, {V(b+i+1)}")
    def setm(q):
        m = mx + q
        a(f"v_mov_b32 {V(t)}, {V(m)}\nv_permlane32_swap_b32 {V(m)}, {V(t)}\nv_max_f32 {V(m)}, {V(m)}, {V(t)}")
        a(f"v_sub_f32 {V(m)}, 0, {V(m)}")
        a(f"v_and_b32 {V(t)}, 0xffff0000, {V(m)}\nv_sub_f32 {V(m)}, {V(m)}, {V(t)}")
        a(f"v_and_b32 {V(t+1)}, 0xffff0000, {V(m)}\nv_sub_f32 {V(m)}, {V(m)}, {V(t+1)}")
        a(f"v_lshrrev_b32 {V(t)}, 16, {V(t)}\nv_or_b32 {V(t)}, {V(t)}, {V(t+1)}\nv_and_b32 {V(Qt+4*q+1)}, {V(t)}, {V(msk)}")
        a(f"v_lshrrev_b32 {V(m)}, 16, {V(m)}\nv_and_b32 {V(Qt+4*q+2)}, {V(m)}, {V(msk)}")
    for q in range(NQ):
        for m in smfma(q, q): a(m)
    for q in range(NQ):
        rowmax(q, mx+q, True); setm(q)
    for m in smfma(0, 0): a(m)
    a("s_nop 7")
    a(f"s_mov_b32 {S(sCnt)}, 0")
    L = a.label("ATT")
    a(f".p2align 4\n{L}:")
    post = {(u, p): [] for u in range(16) for p in range(4)}
    for tl in range(8):
        nt = (tl + 1) % 8; ev = 2*tl; od = ev + 1
        post[ev, 0].append(f"ds_read_b128 {V(Km,4)}, {V(vK)} offset:{nt*1024}")
        post[ev, 1].append(f"ds_read_b32 {V(Kt)}, {V(vKt)} offset:{nt*128}")
        post[ev, 2] += ["s_waitcnt lgkmcnt(2)", f"ds_read_b128 {V(V1,4)}, {V(vV)} offset:{tl*1280 + 640}"]
        post[ev, 3].append("s_waitcnt lgkmcnt(1)")
        post[od, 1].append("s_waitcnt lgkmcnt(0)")
        post[od, 3].append(f"ds_read_b128 {V(V0,4)}, {V(vV)} offset:{nt*1280}")
    free = [(u, p) for u in range(1, 16, 2) for p in (0, 2)]
    seq = [[f"s_cmp_ge_u32 {S(sCnt)}, 6"], [f"s_cselect_b32 {S(sSrc)}, {OOB}, {S(sSrc)}"],
           [f"s_add_u32 m0, {S(sDb)}, {S(sM0)}"], [f"s_add_u32 {S(sT0)}, {S(sSrc)}, 4096", dma_piece(0)], [dma_piece(1)], [dma_piece(2)], [dma_piece(3)],
           [f"s_add_u32 m0, m0, 4096"], [f"s_add_u32 {S(sSrc)}, {S(sSrc)}, {KVCH}", dma_piece(4)],
           wrap(sDb)[:1], wrap(sDb)[1:], wrap(sKb)[:1], wrap(sKb)[1:],
           ["s_waitcnt vmcnt(5)", "s_barrier"], [f"s_add_u32 {S(sCnt)}, {S(sCnt)}, 1"], [f"s_cmp_lt_u32 {S(sCnt)}, 8"]]
    assert len(seq) == len(free) and free[13] == (13, 2)
    for k, x in zip(free, seq): post[k] += x
    post[13, 3] += [f"v_add_u32 {V(vK)}, {S(sKb)}, {V(vL)}", f"v_add_u32 {V(vKt)}, {S(sKb)}, {V(vK0t)}"]
    post[15, 1] += [f"v_add_u32 {V(vV)}, {S(sKb)}, {V(vV0)}"]
    for u in range(16):
        tl, q = divmod(u, 2)
        b = Sb + 16*(u % 2)
        e = lambda i: f"v_exp_f32 {V(b+i)}, {V(b+i)}"
        c = lambda i: f"v_cvt_pk_bf16_f32 {V(P+i)}, {V(b+2*i)}, {V(b+2*i+1)}"
        g = [[e(0), e(1), e(2), c(0), e(3), e(4)], [c(1), e(5), e(6), c(2), e(7), e(8)],
             [c(3), e(9), e(10), c(4), e(11), e(12)], [c(5), e(13), e(14), e(15), c(6), c(7)]]
        s0, s1 = smfma((u+1) % 2, (q+1) % 2)
        ms = [s0, s1, mfma(O+16*((q+1) % 2), V1, P+4), mfma(O+16*q, V0, P)]
        for p in range(4):
            a(ms[p])
            for x in post[u, p]: a(x)
            for x in g[p]: a(x)
    a(f"s_cbranch_scc1 {L}")
    a(mfma(O+16, V1, P+4))
    stamp(a, 5)
    Lfin = a.label("ATTFIN"); Lfb = a.label("ATTFB")
    a("s_waitcnt vmcnt(0) lgkmcnt(0)")
    a(f"s_mov_b32 {S(sT0)}, {f32(2.0**40)}")
    a(f"v_cmp_nge_f32 vcc, {S(sT0)}, {V(O+10)}\nv_cmp_nge_f32 {S(40,2)}, {S(sT0)}, {V(O+26)}")
    a(f"s_nop 1\ns_or_b64 vcc, vcc, {S(40,2)}\ns_nop 4\ns_cbranch_vccnz {Lfb}")
    a(f"{Lfin}:")
    if MODE["mega"]:
        Lg = a.label("AGOK")
        a(f"s_cmp_eq_u32 {S(sVb)}, 1\ns_cbranch_scc1 {Lg}\ns_mov_b32 {S(sT0)}, {WS_FL+FG_G*256}\nv_mov_b32 {V(t)}, 0")
        poll(a, sWS, t, S(sT0), t+1, sT1)
        g_loads()
        a(f"{Lg}:")
    a(f"s_lshr_b32 {S(sT0)}, {S(sHead)}, 3\ns_mul_i32 {S(sT0)}, {S(sT0)}, 9\ns_mul_i32 {S(sT1)}, {S(sTb)}, 36\ns_add_u32 {S(sT0)}, {S(sT0)}, {S(sT1)}")
    a(f"s_add_u32 {S(sT1)}, {S(sT0)}, 8\ns_and_b32 {S(sT2)}, {S(sHead)}, 7\ns_add_u32 {S(sT0)}, {S(sT0)}, {S(sT2)}")
    a(f"s_lshl_b32 {S(sT0)}, {S(sT0)}, 10\ns_add_u32 {S(sT0)}, {S(sT0)}, {WS_OF}\ns_lshl_b32 {S(sT1)}, {S(sT1)}, 10\ns_add_u32 {S(sT1)}, {S(sT1)}, {WS_OF}")
    a(f"s_lshl_b32 {S(sT2)}, {S(sT2)}, 7\ns_add_u32 {S(sT1)}, {S(sT1)}, {S(sT2)}\nv_mov_b32 {V(t+1)}, {V(vQt)}")
    a("s_waitcnt vmcnt(0)")
    for q in range(NQ):
        o = O + 16*q
        a(f"v_rcp_f32 {V(t)}, {V(o+10)}\nv_mul_f32 {V(t)}, {V(t)}, {V(gq+q)}")
        for i in range(10): a(f"v_mul_f32 {V(o+i)}, {V(o+i)}, {V(t)}")
        for i in range(4): a(f"v_cvt_pk_bf16_f32 {V(o+12+i)}, {V(o+2*i)}, {V(o+2*i+1)}")
        a(f"v_cvt_pk_bf16_f32 {V(o+11)}, {V(o+8)}, {V(o+9)}")
        a(f"buffer_store_dwordx4 {V(o+12,4)}, {V(vL)}, {S(sWS,4)}, {S(sT0)} offen{SC()}")
        a(f"buffer_store_dword {V(o+11)}, {V(t+1)}, {S(sWS,4)}, {S(sT1)} offen{SC()}")
        if q + 1 < NQ: a(f"s_add_u32 {S(sT0)}, {S(sT0)}, {36*1024}\ns_add_u32 {S(sT1)}, {S(sT1)}, {36*1024}")
    a(f"s_lshl_b32 {S(sT0)}, {S(sQg)}, 2\ns_lshr_b32 {S(sT1)}, {S(sHead)}, 3\ns_add_u32 {S(sT0)}, {S(sT0)}, {S(sT1)}\ns_lshl_b32 {S(sT0)}, {S(sT0)}, 8\ns_add_u32 {S(sT0)}, {S(sT0)}, {WS_FL+FO_G*256}")
    signal(a, sWS, S(sT0), 8)
    prof_end(a, kidx)
    a("s_endpgm")
    a(f"{Lfb}:")
    def tile_off():
        a(f"s_lshr_b32 {S(sT0)}, {S(sCnt)}, 3\ns_mul_i32 {S(sT0)}, {S(sT0)}, {KVCH}\ns_add_u32 {S(sT0)}, {S(sT0)}, {S(sKV)}\ns_and_b32 {S(sT2)}, {S(sCnt)}, 7")
        a(f"s_lshl_b32 {S(sT1)}, {S(sT2)}, 10\ns_add_u32 {S(sT1)}, {S(sT1)}, {S(sT0)}")
        a(f"buffer_load_dwordx4 {V(Km,4)}, {V(vL)}, {S(sWS,4)}, {S(sT1)} offen{SC()}")
        a(f"s_lshl_b32 {S(sT1)}, {S(sT2)}, 7\ns_add_u32 {S(sT1)}, {S(sT1)}, {S(sT0)}")
        a(f"buffer_load_dword {V(Kt)}, {V(vK0t)}, {S(sWS,4)}, {S(sT1)} offen{SC()}")
    for q in range(NQ):
        a(f"v_mov_b32 {V(Qt+4*q+1)}, 0\nv_mov_b32 {V(Qt+4*q+2)}, 0\nv_mov_b32 {V(mx+q)}, 0xff800000")
    for i in range(16*NQ): a(f"v_mov_b32 {V(O+i)}, 0")
    a(f"s_mov_b32 {S(sCnt)}, 0")
    L1 = a.label("ATTF1"); L2 = a.label("ATTF2")
    a(f"{L1}:")
    tile_off()
    a("s_waitcnt vmcnt(0)")
    for q in range(NQ):
        for m in smfma(q, q): a(m)
    for q in range(NQ): rowmax(q, mx+q, False)
    a(f"s_add_u32 {S(sCnt)}, {S(sCnt)}, 1\ns_cmp_lt_u32 {S(sCnt)}, 64\ns_cbranch_scc1 {L1}")
    for q in range(NQ): setm(q)
    a(f"s_mov_b32 {S(sCnt)}, 0")
    a(f"{L2}:")
    tile_off()
    a(f"s_mul_i32 {S(sT1)}, {S(sT2)}, 1280\ns_add_u32 {S(sT1)}, {S(sT1)}, {S(sT0)}")
    a(f"buffer_load_dwordx4 {V(V0,4)}, {V(vV0)}, {S(sWS,4)}, {S(sT1)} offen{SC()}")
    a(f"buffer_load_dwordx4 {V(V1,4)}, {V(vV0)}, {S(sWS,4)}, {S(sT1)} offen offset:640{SC()}")
    a("s_waitcnt vmcnt(0)")
    for q in range(NQ):
        for m in smfma(q, q): a(m)
    for q in range(NQ):
        b = Sb + 16*q
        for i in range(16): a(f"v_exp_f32 {V(b+i)}, {V(b+i)}")
        for i in range(8): a(f"v_cvt_pk_bf16_f32 {V(P+i)}, {V(b+2*i)}, {V(b+2*i+1)}")
        a(mfma(O+16*q, V0, P)); a(mfma(O+16*q, V1, P+4))
    a(f"s_add_u32 {S(sCnt)}, {S(sCnt)}, 1\ns_cmp_lt_u32 {S(sCnt)}, 64\ns_cbranch_scc1 {L2}")
    a(f"s_nop 15\ns_branch {Lfin}")
```

```python
from common import *
import copy
WS_FL = WS_T
FQ_G, FU_G, FO_G, FG_G = 0, 4, 28, 60
LDS_BYTES = 81920
vLane, vH, vL31, vL, vT = 1, 2, 3, 4, 5
V0FREE = 9
sDBG, sWS, sWave = 12, 16, 20
MODE = dict(mega=True)
def SC(): return " sc1" if MODE["mega"] else ""

def NT(n): return " nt" if CFG.get("nt_" + n) else ""
def entry(a):
    stamp(a, 0)
    a("s_load_dwordx16 s[64:79], s[0:1], 0\ns_load_dwordx8 s[80:87], s[0:1], 64")
    a(f"v_and_b32 {V(vLane)}, 63, v0\nv_lshrrev_b32 {V(vT)}, 6, v0\nv_readfirstlane_b32 {S(sWave)}, {V(vT)}")
    a(f"v_lshrrev_b32 {V(vH)}, 5, {V(vLane)}\nv_and_b32 {V(vL31)}, 31, {V(vLane)}\nv_lshlrev_b32 {V(vL)}, 4, {V(vLane)}")
def srd(a, d, name):
    p = 64 + KA[name] // 4
    a(f"s_mov_b32 {S(d)}, {S(p)}\ns_and_b32 {S(d+1)}, {S(p+1)}, 0xffff\ns_mov_b32 {S(d+2)}, {NB[name]}\ns_mov_b32 {S(d+3)}, 0x20000")
def entry_fin(a):
    srd(a, sWS, "ws"); srd(a, sDBG, "dbg")

def poll(a, srd, voff, soff, vtmp, sc, off=128):
    if not MODE["mega"]: return
    L = a.label("POLL"); Ld = a.label("POLLD")
    a(f"s_mov_b32 {S(sc)}, 0x20000")
    a(f"{L}:")
    a(f"buffer_load_dword {V(vtmp)}, {V(voff)}, {S(srd,4)}, {soff} offen offset:{off} sc1")
    a(f"s_waitcnt vmcnt(0)")
    a(f"v_cmp_ne_u32 vcc, 1, {V(vtmp)}")
    a(f"s_nop 4\ns_cbranch_vccz {Ld}")
    a(f"s_sleep 2\ns_sub_u32 {S(sc)}, {S(sc)}, 1\ns_cmp_lg_u32 {S(sc)}, 0\ns_cbranch_scc1 {L}")
    a(f"{Ld}:")
def poll_f0(a, sc, ln=True, then=None):
    if not MODE["mega"]: return
    L = a.label("PF0")
    a(f"s_cmp_lg_u32 {S(sWave)}, 0\ns_cbranch_scc1 {L}")
    if ln: a(f"v_and_b32 {V(vT)}, 1, {V(vLane)}\nv_lshlrev_b32 {V(vT)}, 2, {V(vT)}")
    else: a(f"v_mov_b32 {V(vT)}, 4")
    poll(a, sDBG, vT, "0", vT+1, sc)
    if then: then()
    a(f"{L}:")
def zero_sync(a):
    a(f"v_mov_b32 {V(vT)}, 0\nv_lshlrev_b32 {V(vT+1)}, 8, {V(vLane)}\ns_mov_b32 s21, {WS_FL}")
    a(f"buffer_store_dword {V(vT)}, {V(vT+1)}, {S(sWS,4)}, s21 offen sc1\nbuffer_store_dword {V(vT)}, {V(vT+1)}, {S(sWS,4)}, s21 offen offset:128 sc1\nbuffer_store_dword {V(vT)}, {V(vT+1)}, {S(sWS,4)}, s21 offen offset:192 sc1")
    a(f"s_nop 0\nv_mov_b32 {V(vT+1)}, 1\ns_waitcnt vmcnt(0)\ns_mov_b64 exec, 1\nbuffer_store_dword {V(vT+1)}, {V(vT)}, {S(sDBG,4)}, 0 offen offset:132 sc1\ns_mov_b64 exec, -1")
def signal(a, srd, soff, n, nyoung=0, stmp=43, early=0):
    if not MODE["mega"]: return
    L = a.label("SIG"); L2 = a.label("SIGR")
    a(f"s_waitcnt vmcnt({nyoung})\ns_barrier\ns_cmp_lg_u32 {S(sWave)}, 0\ns_cbranch_scc1 {L}")
    a(f"v_mov_b32 {V(vT)}, 0\nv_mov_b32 {V(vT+1)}, 1\nv_mov_b32 {V(vT+2)}, 1\ns_mov_b64 exec, 1")
    a(f"buffer_atomic_add {V(vT+1)}, {V(vT)}, {S(srd,4)}, {soff} offen sc0 sc1\ns_waitcnt vmcnt(0)")
    a(f"v_readfirstlane_b32 {S(stmp)}, {V(vT+1)}")
    if early:
        L3 = a.label("SIGE")
        a(f"s_cmp_lg_u32 {S(stmp)}, {early-1}\ns_cbranch_scc1 {L3}\nbuffer_store_dword {V(vT+2)}, {V(vT)}, {S(srd,4)}, {soff} offen offset:192 sc1\n{L3}:")
    a(f"s_cmp_lg_u32 {S(stmp)}, {n-1}\ns_cbranch_scc1 {L2}")
    a(f"buffer_store_dword {V(vT+2)}, {V(vT)}, {S(srd,4)}, {soff} offen offset:128 sc1")
    a(f"{L2}:\ns_mov_b64 exec, -1")
    a(f"{L}:")
```

```python
from m_common import *
G1SLOT = 14336
WB = [0, 4096, 8192, 11264]
def g1_alloc(va, R):
    R.update(vWs=va.alloc(2), vWr=va.alloc(2), vXs=va.alloc(), vX1=va.alloc(), bias=va.alloc(8, 2))
def g1_setup(a, va, R):
    sFt, sDt, sXoff, sWoff, sM0, sCnt, sT0, sT1, sT2 = range(24, 33)
    R.update(sFt=sFt, sDt=sDt, sXoff=sXoff, sWoff=sWoff, sM0=sM0, sCnt=sCnt, sT0=sT0, sT1=sT1, sT2=sT2)
    t = vT; lane, hh = vLane, vH
    a(f"s_and_b32 {S(sT0)}, s2, 7\ns_mul_i32 {S(sT0)}, {S(sT0)}, 27\ns_lshr_b32 {S(sT1)}, s2, 3\ns_add_u32 {S(sT0)}, {S(sT0)}, {S(sT1)}")
    a(f"s_mul_i32 {S(sFt)}, {S(sT0)}, 171\ns_lshr_b32 {S(sFt)}, {S(sFt)}, 10\ns_mul_i32 {S(sT1)}, {S(sFt)}, 6\ns_sub_u32 {S(sDt)}, {S(sT0)}, {S(sT1)}")
    a(f"s_lshl_b32 {S(sM0)}, {S(sWave)}, 12\ns_lshl_b32 {S(sT0)}, {S(sWave)}, 11\ns_cmp_eq_u32 {S(sWave)}, 3\ns_cselect_b32 {S(sM0)}, {WB[3]}, {S(sM0)}\ns_cselect_b32 {S(sT0)}, 5120, {S(sT0)}")
    a(f"s_mul_i32 {S(sXoff)}, {S(sDt)}, 393216\ns_add_u32 {S(sXoff)}, {S(sXoff)}, {S(sT0)}\ns_add_u32 {S(sXoff)}, {S(sXoff)}, {WS_HT - 2048}")
    assert WS_HT >= 2048
    a(f"s_mul_i32 {S(sWoff)}, {S(sWave)}, {8*9216}\ns_lshl_b32 {S(sT0)}, {S(sFt)}, 8\ns_add_u32 {S(sWoff)}, {S(sWoff)}, {S(sT0)}")
    vWs, vWr, vX1 = R["vWs"], R["vWr"], R["vX1"]
    a(f"v_lshrrev_b32 {V(t)}, 4, {V(lane)}\nv_lshlrev_b32 {V(t+1)}, 2, {V(t)}\nv_and_b32 {V(t+2)}, 15, {V(lane)}\nv_xor_b32 {V(t+1)}, {V(t+1)}, {V(t+2)}")
    a(f"v_mul_u32_u24 {V(t)}, 9216, {V(t)}\nv_lshl_add_u32 {V(vWs)}, {V(t+1)}, 4, {V(t)}\nv_add_u32 {V(vWs+1)}, {4*9216-1024}, {V(vWs)}")
    a(f"v_bfe_u32 {V(t)}, {V(lane)}, 2, 2\nv_lshlrev_b32 {V(t+1)}, 8, {V(t)}")
    a(f"v_bfe_u32 {V(t+2)}, {V(lane)}, 4, 1\nv_lshl_add_u32 {V(t+1)}, {V(t+2)}, 5, {V(t+1)}")
    a(f"v_and_b32 {V(t+2)}, 3, {V(lane)}\nv_lshl_add_u32 {V(t+1)}, {V(t+2)}, 3, {V(t+1)}")
    a(f"v_xor_b32 {V(t)}, {S(sWave)}, {V(t)}\nv_lshl_add_u32 {V(t+1)}, {V(t)}, 6, {V(t+1)}")
    a(f"v_lshl_add_u32 {V(vWr)}, {V(hh)}, 12, {V(t+1)}")
    a(f"v_mul_u32_u24 {V(t)}, 3072, {V(hh)}\nv_add_u32 {V(t)}, 8192, {V(t)}\nv_add_u32 {V(vWr+1)}, {V(t)}, {V(t+1)}")
    a(f"v_add_u32 {V(vX1)}, 8192, {V(vL)}")
    a(f"s_lshl_b32 {S(sT0)}, {S(sFt)}, 8\ns_lshl_b32 {S(sT1)}, {S(sWave)}, 6\ns_add_u32 {S(sT0)}, {S(sT0)}, {S(sT1)}\nv_lshlrev_b32 {V(vT)}, 3, {V(vH)}")
    for g in range(4): a(f"buffer_load_dwordx2 {V(R['bias']+2*g,2)}, {V(vT)}, s[8:11], {S(sT0)} offen offset:{16*g}")

def g1_dma(a, R, st, vm):
    L = a.label("G1S")
    vm.issue(f"X{st}", 3)
    w, x = S(R['sWoff']), S(R['sXoff'])
    return [f"s_add_u32 m0, {S(R['sM0'])}, {(st % 5)*G1SLOT}",
            f"buffer_load_dwordx4 {V(R['vWs'])}, s[4:7], {w} offen lds",
            f"buffer_load_dwordx4 {V(R['vWs']+1)}, s[4:7], {w} offen offset:1024 lds\ns_add_u32 {w}, {w}, {32*9216}",
            f"s_cbranch_vccz {L}\nbuffer_load_dwordx4 {V(vL)}, {S(sWS,4)}, {x} offen offset:3072{SC()} lds\n{L}:\ns_add_u32 {x}, {x}, 6144",
            f"buffer_load_dwordx4 {V(vL)}, {S(sWS,4)}, {x} offen offset:2048{SC()} lds"]

def g1_main(a, va, R, vm):
    sT0, sT1, sCnt, bias = R["sT0"], R["sT1"], R["sCnt"], R["bias"]
    acc = va.alloc(48, 4); bf = va.alloc(16, 4); fr = va.alloc(64, 4)
    a(f"s_cmp_lt_u32 {S(sWave)}, 2\ns_cselect_b64 vcc, -1, 0")
    for st in range(5):
        d = g1_dma(a, R, st, vm)
        for x in (d[0], d[1], d[2], d[4], d[3]): a(x)
    def Wf(st, ks): return fr + 32*(st % 2) + 16*ks
    def Xf(st, ks, b): return fr + 32*(st % 2) + 16*ks + 4 + 4*b
    XP = [2048, 3072, 6144, 7168, 10240, 13312]
    def reads(st):
        o = []; sl = (st % 5)*G1SLOT
        for ks in range(2):
            o.append(f"ds_read_b64_tr_b16 {V(Wf(st,ks),2)}, {V(R['vWr']+ks)} offset:{sl}")
            o.append(f"ds_read_b64_tr_b16 {V(Wf(st,ks)+2,2)}, {V(R['vWr']+ks)} offset:{sl + 1024}")
            for b in range(3):
                p = XP[3*ks+b]
                o.append(f"ds_read_b128 {V(Xf(st,ks,b),4)}, {V(vL if p < 8192 else R['vX1'])} offset:{sl + p % 8192}")
        return o
    a(f"s_waitcnt vmcnt({vm.wait('X0')})\ns_barrier")
    stamp(a, 3)
    for x in reads(0): a(x)
    for g in range(4):
        for i in range(2):
            a(f"v_lshlrev_b32 {V(bf+4*g+2*i)}, 16, {V(bias+2*g+i)}\nv_and_b32 {V(bf+4*g+2*i+1)}, 0xffff0000, {V(bias+2*g+i)}")
    a(f"s_setprio {CFG['prio_g1']}")
    NST = 64
    def stage(st):
        ms = [mfma(acc+16*b, Wf(st,ks), Xf(st,ks,b), V(bf,16) if (st == 0 and ks == 0) else None) for ks in range(2) for b in range(3)]
        rd = []; dm = []
        if st + 1 < NST:
            a(f"s_waitcnt vmcnt({vm.wait(f'X{st+1}')}) lgkmcnt(0)")
            a(ms[0])
            a("s_barrier")
            rd = reads(st+1)
            if st + 5 < NST: dm = g1_dma(a, R, st+5, vm)
        else:
            a("s_waitcnt lgkmcnt(0)"); a(ms[0])
        if not dm: dm = [""] * 5
        a(dm[0])
        for x in rd[:1]: a(x)
        a(dm[1])
        for x in rd[1:3]: a(x)
        a(ms[1])
        for x in rd[3:6]: a(x)
        a(dm[2])
        a(ms[2])
        for x in rd[6:]: a(x)
        a(ms[3])
        a(dm[4])
        a(ms[4])
        a(ms[5])
        a(dm[3])
    HEAD = 4
    for st in range(HEAD): stage(st)
    L = a.label("G1L")
    a(f"s_mov_b32 {S(sCnt)}, {(54-HEAD)//10}\n.p2align 4\n{L}:")
    q0 = list(vm.q)
    for st in range(HEAD, HEAD+10): stage(st)
    assert [t[0] + str(int(t[1:]) - 10) for t in vm.q] == q0, (vm.q, q0)
    if PROF["on"]: a(f"s_memrealtime s[100:101]\ns_add_u32 s96, {S(sCnt)}, 10\ns_waitcnt lgkmcnt(0)\ns_mov_b32 m0, s96\ns_nop 3\nv_writelane_b32 v255, s100, m0")
    a(f"s_sub_u32 {S(sCnt)}, {S(sCnt)}, 1\ns_cmp_lg_u32 {S(sCnt)}, 0\ns_cbranch_scc1 {L}")
    vm.q = [t[0] + str(int(t[1:]) + 54 - HEAD) for t in q0]
    for st in range(54, 64): stage(st)
    a("s_setprio 3")
    stamp(a, 4)
    R["acc"] = acc; R["fr"] = fr

def g1_epilogue(a, va, R, vm):
    sT0, sT1, acc = R["sT0"], R["sT1"], R["acc"]
    tmp = R["fr"]; pk = tmp + 16; cc = tmp + 24
    c0 = -2.0 * math.sqrt(2.0 / math.pi) * math.log2(math.e)
    a(f"s_mov_b32 s60, {f32(c0*0.044715)}\nv_mov_b32 {V(cc)}, {f32(c0)}")
    a(f"s_mul_i32 {S(sT0)}, {S(R['sDt'])}, 288\ns_lshl_b32 {S(sT1)}, {S(R['sFt'])}, 3\ns_add_u32 {S(sT0)}, {S(sT0)}, {S(sT1)}\ns_lshl_b32 {S(sT1)}, {S(sWave)}, 1")
    a(f"s_add_u32 {S(sT0)}, {S(sT0)}, {S(sT1)}\ns_mul_i32 {S(sT0)}, {S(sT0)}, 3072\ns_add_u32 {S(sT0)}, {S(sT0)}, {WS_U}\ns_add_u32 {S(sT1)}, {S(sT0)}, 3072")
    for xb in range(3):
        for hf in range(2):
            x = acc + 16*xb + 8*hf
            for i in range(8): a(f"v_mul_f32 {V(tmp+i)}, {V(x+i)}, {V(x+i)}")
            for i in range(8): a(f"v_fma_f32 {V(tmp+i)}, {V(tmp+i)}, s60, {V(cc)}")
            for i in range(8): a(f"v_mul_f32 {V(tmp+i)}, {V(tmp+i)}, {V(x+i)}")
            for i in range(8): a(f"v_exp_f32 {V(tmp+i)}, {V(tmp+i)}")
            for i in range(8): a(f"v_add_f32 {V(tmp+i)}, 1.0, {V(tmp+i)}")
            for i in range(8): a(f"v_rcp_f32 {V(tmp+i)}, {V(tmp+i)}")
            for i in range(8): a(f"v_mul_f32 {V(x+i)}, {V(x+i)}, {V(tmp+i)}")
            for i in range(4): a(f"v_cvt_pk_bf16_f32 {V(pk+4*hf+i)}, {V(x+2*i)}, {V(x+2*i+1)}")
            a(f"buffer_store_dwordx4 {V(pk+4*hf,4)}, {V(vL)}, {S(sWS,4)}, {S(sT1 if hf else sT0)} offen offset:{xb*1024}{SC()}"); vm.issue("ust")
    a(f"s_mul_i32 {S(sT0)}, {S(R['sFt'])}, 57\ns_lshr_b32 {S(sT0)}, {S(sT0)}, 9\ns_lshl_b32 s34, {S(R['sDt'])}, 2\ns_add_u32 s34, s34, {S(sT0)}\ns_lshl_b32 s34, s34, 8\ns_add_u32 s34, s34, {WS_FL + FU_G*256}")
    for x in range(36): assert (x*57) >> 9 == x // 9
```

```python
from m_common import *
from pgemm import reduce4_96x64
G2R = 20480
N2 = 4
def g2_setup(a, va, R, vm):
    sSt, sDt, sXoff, sWoff, sM0, sCnt, sT0, sT1, sT2, sOoff, sO1, sWo = list(range(21, 30)) + [35, 36, 37]
    R.update(sSt=sSt, sDt=sDt, sXoff=sXoff, sWoff=sWoff, sM0=sM0, sCnt=sCnt, sT0=sT0, sT1=sT1, sT2=sT2, sOoff=sOoff, sO1=sO1, sWo=sWo)
    t = vT; lane, hh, l31 = vLane, vH, vL31
    a(f"s_lshr_b32 {S(sT0)}, s2, 3\ns_mul_i32 {S(sT1)}, {S(sT0)}, 43\ns_lshr_b32 {S(sT1)}, {S(sT1)}, 8")
    a(f"s_mul_i32 {S(sT2)}, {S(sT1)}, 6\ns_sub_u32 {S(sDt)}, {S(sT0)}, {S(sT2)}")
    a(f"s_and_b32 {S(sSt)}, s2, 7\ns_lshl_b32 {S(sSt)}, {S(sSt)}, 2\ns_add_u32 {S(sSt)}, {S(sSt)}, {S(sT1)}")
    a(f"s_lshl_b32 {S(sT0)}, {S(sDt)}, 2\ns_add_u32 {S(sT0)}, {S(sT0)}, {S(sWave)}\ns_mul_i32 {S(sXoff)}, {S(sT0)}, {72*3072}\ns_add_u32 {S(sXoff)}, {S(sXoff)}, {WS_U}")
    a(f"s_mul_i32 {S(sWoff)}, {S(sWave)}, {1152*4096}\ns_lshl_b32 {S(sT0)}, {S(sSt)}, 7\ns_add_u32 {S(sWoff)}, {S(sWoff)}, {S(sT0)}")
    a(f"s_mul_i32 {S(sM0)}, {S(sWave)}, {G2R}")
    vX = va.alloc(); vWs = va.alloc(2); vWr = va.alloc(2)
    R.update(vX=vX, vWs=vWs, vWr=vWr)
    a(f"v_lshrrev_b32 {V(t)}, 3, {V(lane)}\nv_bfe_u32 {V(t+1)}, {V(lane)}, 4, 1\nv_lshlrev_b32 {V(t+1)}, 2, {V(t+1)}\nv_and_b32 {V(t+2)}, 7, {V(lane)}\nv_xor_b32 {V(t+1)}, {V(t+1)}, {V(t+2)}")
    a(f"v_lshlrev_b32 {V(t)}, 12, {V(t)}\nv_lshl_add_u32 {V(vWs)}, {V(t+1)}, 4, {V(t)}\nv_add_u32 {V(vWs+1)}, {8*4096-1024}, {V(vWs)}")
    for k in range(N2):
        a(g2_m0(R, k)); a(g2_dma_w(R, k, vm))
    a(f"s_lshr_b32 {S(sT0)}, {S(sWave)}, 1\ns_lshl_b32 {S(sT0)}, {S(sT0)}, 8\nv_xor_b32 {V(vX)}, {S(sT0)}, {V(vL)}")
    a(f"v_bfe_u32 {V(t)}, {V(lane)}, 2, 2\nv_lshl_add_u32 {V(t+1)}, {V(hh)}, 2, {V(t)}\nv_lshlrev_b32 {V(t+1)}, 7, {V(t+1)}")
    a(f"v_bfe_u32 {V(t+2)}, {V(lane)}, 4, 1\nv_lshl_add_u32 {V(t+1)}, {V(t+2)}, 5, {V(t+1)}")
    a(f"v_and_b32 {V(t+2)}, 3, {V(lane)}\nv_lshl_add_u32 {V(t+1)}, {V(t+2)}, 3, {V(t+1)}\nv_add_u32 {V(t+1)}, {S(sM0)}, {V(t+1)}")
    a(f"s_and_b32 {S(sT0)}, {S(sWave)}, 1\nv_lshrrev_b32 {V(t)}, 1, {V(t)}\nv_xor_b32 {V(t)}, {S(sT0)}, {V(t)}")
    for b in range(2): a(f"v_xor_b32 {V(t+2)}, {b}, {V(t)}\nv_lshl_add_u32 {V(vWr+b)}, {V(t+2)}, 6, {V(t+1)}")

def g2_m0(R, k): return f"s_add_u32 m0, {S(R['sM0'])}, {(k % N2)*2048}"
def g2_dma_w(R, k, vm):
    vm.issue(f"W{k}", 2)
    w = S(R['sWoff'])
    return (f"buffer_load_dwordx4 {V(R['vWs'])}, s[4:7], {w} offen lds\nbuffer_load_dwordx4 {V(R['vWs']+1)}, s[4:7], {w} offen offset:1024 lds\n"
            f"s_add_u32 {w}, {w}, 65536")

def g2_main(a, va, R, vm):
    sSt, sDt, sM0, sCnt, sT0, sT1, sT2, sOoff, sO1, sWo = [R[k] for k in "sSt sDt sM0 sCnt sT0 sT1 sT2 sOoff sO1 sWo".split()]
    t = vT; lane, hh, l31 = vLane, vH, vL31
    N = N2; NX = 6; NS = 72; TAIL = 8
    b2r = va.alloc(); gA = va.alloc(2, 2); gB = va.alloc(2, 2); vO = va.alloc(); vFl = va.alloc(); fl = va.alloc()
    vOs = va.alloc(3); vOt = va.alloc(3); vOr = va.alloc()
    accb = va.alloc(96, 4)
    mk = va.mark()
    xr = va.alloc(12*NX, 4); wf = va.alloc(16, 4); of_ = va.alloc(24, 4)
    def ofr(j): return of_ + 8*j if j < 3 else (xr + 8*(j-3) if j < 6 else xr + 48 + 8*(j-6))
    def accv(xb, wb): return accb + 16*(3*wb + xb)
    a(f"s_and_b32 {S(sT2)}, {S(sWave)}, 1\ns_lshl_b32 {S(sT1)}, {S(sSt)}, 6\ns_lshl_b32 {S(sT0)}, {S(sT2)}, 5\ns_add_u32 {S(sT0)}, {S(sT0)}, {S(sT1)}\nv_add_u32 {V(t)}, {S(sT0)}, {V(l31)}")
    a(f"v_lshlrev_b32 {V(t+1)}, 1, {V(t)}\nv_lshlrev_b32 {V(gA)}, 3, {V(t)}\nv_add_u32 {V(gA)}, {WS_G+4}, {V(gA)}\nv_xor_b32 {V(gB)}, 256, {V(gA)}")
    assert WS_G % 512 == 0
    a(f"buffer_load_ushort {V(b2r)}, {V(t+1)}, s[44:47], 0 offen"); vm.issue("g", 1)
    a(f"v_mul_u32_u24 {V(vO)}, 1152, {V(t)}\nv_lshl_add_u32 {V(vO)}, {V(hh)}, 4, {V(vO)}")
    a(f"s_lshl_b32 {S(sT0)}, {S(sSt)}, 1\ns_add_u32 {S(sT0)}, {S(sT0)}, {S(sT2)}\ns_mul_i32 {S(sT1)}, {S(sWave)}, {9*1024}\ns_add_u32 {S(sT1)}, {S(sT1)}, {WS_OF}")
    a(f"s_mul_i32 {S(sOoff)}, {S(sT0)}, {36*1024}\ns_add_u32 {S(sOoff)}, {S(sOoff)}, {S(sT1)}")
    a(f"s_xor_b32 {S(sT0)}, {S(sT0)}, 1\ns_mul_i32 {S(sO1)}, {S(sT0)}, {36*1024}\ns_add_u32 {S(sO1)}, {S(sO1)}, {S(sT1)}")
    a(f"s_mul_i32 {S(sWo)}, {S(sWave)}, {144*1152}\ns_mul_i32 {S(sT0)}, {S(sDt)}, 192\ns_add_u32 {S(sWo)}, {S(sWo)}, {S(sT0)}")
    for i in range(3):
        a(f"v_add_u32 {V(t)}, {64*i}, {V(lane)}\nv_mul_u32_u24 {V(t+1)}, 171, {V(t)}\nv_lshrrev_b32 {V(t+1)}, 11, {V(t+1)}")
        a(f"v_mul_u32_u24 {V(t+2)}, 12, {V(t+1)}\nv_sub_u32 {V(t+2)}, {V(t)}, {V(t+2)}\nv_lshlrev_b32 {V(t+2)}, 4, {V(t+2)}")
        a(f"v_mul_u32_u24 {V(t)}, 1152, {V(t+1)}\nv_add_u32 {V(vOs+i)}, {V(t)}, {V(t+2)}")
        a(f"v_bfe_u32 {V(t)}, {V(t+1)}, 2, 1\nv_lshlrev_b32 {V(t)}, 2, {V(t)}\nv_lshrrev_b32 {V(t+3)}, 3, {V(t+1)}\nv_lshl_add_u32 {V(t)}, {V(t+3)}, 1, {V(t)}")
        a(f"v_bfe_u32 {V(t+3)}, {V(t+1)}, 1, 1\nv_add_u32 {V(t)}, {V(t)}, {V(t+3)}\nv_mul_u32_u24 {V(t)}, 18, {V(t)}\nv_and_b32 {V(t+3)}, 1, {V(t+1)}")
        a(f"v_add3_u32 {V(t)}, {V(t)}, {V(t+3)}, 16\nv_mul_u32_u24 {V(t)}, 1152, {V(t)}\nv_add_u32 {V(vOt+i)}, {V(t)}, {V(t+2)}")
    a(f"s_lshr_b32 {S(sT0)}, {S(sWave)}, 1\nv_bfe_u32 {V(t+2)}, {V(lane)}, 4, 1\nv_xor_b32 {V(t+2)}, {S(sT0)}, {V(t+2)}\nv_lshlrev_b32 {V(t+1)}, 5, {V(t+2)}")
    a(f"v_and_b32 {V(t+2)}, 3, {V(lane)}\nv_lshl_add_u32 {V(t+1)}, {V(t+2)}, 3, {V(t+1)}\nv_add_u32 {V(t+1)}, {S(sM0)}, {V(t+1)}")
    a(f"v_bfe_u32 {V(t)}, {V(lane)}, 2, 2\nv_lshl_add_u32 {V(t+2)}, {V(hh)}, 2, {V(t)}\nv_mul_u32_u24 {V(t+2)}, 192, {V(t+2)}\nv_add_u32 {V(vOr)}, {V(t+2)}, {V(t+1)}")
    a(f"s_and_b32 {S(sT0)}, {S(sSt)}, 28\ns_add_u32 {S(sT0)}, {S(sT0)}, {S(sWave)}\ns_lshl_b32 {S(sT0)}, {S(sT0)}, 8\ns_add_u32 {S(sT0)}, {S(sT0)}, {WS_FL+FO_G*256}\nv_mov_b32 {V(vFl)}, {S(sT0)}")
    if MODE["mega"]:
        a(f"s_lshl_b32 {S(sT0)}, {S(sDt)}, 2\ns_add_u32 {S(sT0)}, {S(sT0)}, {S(sWave)}\ns_lshl_b32 {S(sT0)}, {S(sT0)}, 8\ns_add_u32 {S(sT0)}, {S(sT0)}, {WS_FL+FU_G*256}\nv_mov_b32 {V(t)}, 0")
        poll(a, sWS, t, S(sT0), t+1, sT1)
        vm.q = []
    stamp(a, 6)
    def issue_x(k):
        x = S(R['sXoff'])
        o = ""
        for b in range(3): o += f"buffer_load_dwordx4 {V(xr + 12*(k % NX) + 4*b, 4)}, {V(R['vX'])}, {S(sWS,4)}, {x} offen offset:{b*1024}{SC()}\n"
        vm.issue(f"X{k}", 3)
        return o + f"s_add_u32 {x}, {x}, 3072"
    def rd_w(k, b):
        d = wf + 8*(k % 2) + 4*b; off = (k % N)*2048
        return f"ds_read_b64_tr_b16 {V(d,2)}, {V(R['vWr']+b)} offset:{off}\nds_read_b64_tr_b16 {V(d+2,2)}, {V(R['vWr']+b)} offset:{off+1024}"
    wo_pos = [8192, 11264, 14336, 17408, 0, 3072, 8192, 11264, 14336]
    def wo_dma(j):
        o = ""
        if j == 8: o += f"s_sub_u32 {S(sWo)}, {S(sWo)}, {8*18*1152}\n"
        for i in range(3):
            o += f"s_add_u32 m0, {S(sM0)}, {wo_pos[j] + i*1024}\ns_nop 0\nbuffer_load_dwordx4 {V((vOs if j < 8 else vOt)+i)}, s[8:11], {S(sWo)} offen lds\n"
        vm.issue(f"P{j}", 3)
        return o + f"s_add_u32 {S(sWo)}, {S(sWo)}, {18*1152}"
    def o_load(j):
        if j == 8:
            vm.issue("O8", 8)
            o = f"v_lshlrev_b32 {V(t)}, 9, {V(hh)}\nv_lshl_add_u32 {V(t)}, {V(l31)}, 2, {V(t)}\n"
            return o + "\n".join(f"buffer_load_dword {V(ofr(8)+4*b+q)}, {V(t)}, {S(sWS,4)}, {S(sO1 if b else sOoff)} offen offset:{q*128}{SC()}" for b in range(2) for q in range(4))
        vm.issue(f"O{j}", 2)
        o = f"buffer_load_dwordx4 {V(ofr(j),4)}, {V(vL)}, {S(sWS,4)}, {S(sOoff)} offen offset:{(j % 4)*1024}{SC()}\n"
        o += f"buffer_load_dwordx4 {V(ofr(j)+4,4)}, {V(vL)}, {S(sWS,4)}, {S(sO1)} offen offset:{(j % 4)*1024}{SC()}"
        if j % 4 == 3: o += f"\ns_add_u32 {S(sOoff)}, {S(sOoff)}, 4096\ns_add_u32 {S(sO1)}, {S(sO1)}, 4096"
        return o
    for k in range(NX-1): a(issue_x(k))
    a(f"s_waitcnt vmcnt({vm.wait('X0')})")
    for b in range(2): a(rd_w(0, b))
    a(f"s_setprio {CFG['prio_g2']}")
    def vwait(*tags):
        tags = [x for x in tags if x in vm.q]
        if not tags: return ""
        last = max(tags, key=lambda x: max(i for i, y in enumerate(vm.q) if y == x))
        return f"s_waitcnt vmcnt({vm.wait(last)})\n"
    def step(k, extra=()):
        per = [[] for _ in range(6)]
        if k + NX - 1 < NS: per[0].append(lambda: issue_x(k + NX - 1))
        if k + N < NS:
            per[0].insert(0, lambda: g2_m0(R, k + N)); per[1].append(lambda: g2_dma_w(R, k + N, vm))
        if k + 1 < NS:
            per[2].append(lambda: vwait(f"X{k+1}", f"W{k+1}") + rd_w(k + 1, 0) + "\n" + rd_w(k + 1, 1))
        for i, f in enumerate(extra): per[3 + i % 3].append(f)
        a("s_waitcnt lgkmcnt(0)")
        for m in range(6):
            wb, xb = divmod(m, 3)
            a(mfma(accv(xb, wb), xr + 12*(k % NX) + 4*xb, wf + 8*(k % 2) + 4*wb, "0" if k == 0 else None))
            for f in per[m]: a(f())
    HEAD, UN = 4, 12
    for k in range(HEAD): step(k)
    L = a.label("G2L")
    a(f"s_mov_b32 {S(sCnt)}, {(NS-HEAD-TAIL)//UN}\n.p2align 4\n{L}:")
    q0 = list(vm.q)
    for k in range(HEAD, HEAD+UN): step(k)
    assert [x[0] + str(int(x[1:]) - UN) for x in vm.q] == q0, (vm.q, q0)
    if PROF["on"]: a(f"s_memrealtime s[100:101]\ns_add_u32 s96, {S(sCnt)}, 20\ns_waitcnt lgkmcnt(0)\ns_mov_b32 m0, s96\ns_nop 3\nv_writelane_b32 v255, s100, m0")
    a(f"s_sub_u32 {S(sCnt)}, {S(sCnt)}, 1\ns_cmp_lg_u32 {S(sCnt)}, 0\ns_cbranch_scc1 {L}")
    base = NS - TAIL
    vm.q = [x[0] + str(int(x[1:]) + base - HEAD) for x in q0]
    def fl_issue():
        vm.issue("F0"); return f"buffer_load_dword {V(fl)}, {V(vFl)}, {S(sWS,4)}, 0 offen offset:128 sc1"
    Lslow = a.label("G2SLOW"); Lback = a.label("G2BACK")
    def fl_check():
        return f"v_cmp_ne_u32 vcc, 1, {V(fl)}\ns_nop 4\ns_cbranch_vccnz {Lslow}\n{Lback}:"
    ex = {base: [lambda: wo_dma(0), lambda: wo_dma(1)], base+1: [lambda: wo_dma(2), lambda: wo_dma(3)]}
    def g_load():
        vm.issue("G0", 2)
        return f"buffer_load_dword {V(gA+1)}, {V(gA)}, {S(sWS,4)}, 0 offen{SC()}\nbuffer_load_dword {V(gB+1)}, {V(gB)}, {S(sWS,4)}, 0 offen{SC()}"
    ck = CFG["fo_ck"]
    if MODE["mega"]:
        ex[base+ck-3] = [fl_issue] + ex.get(base+ck-3, [])
    ex[base+ck] = ([lambda: vwait('F0') + fl_check() + "\n" + g_load()] if MODE["mega"] else [g_load]) + [lambda: o_load(0) + "\n" + o_load(1), lambda: o_load(2)]
    ex[base+ck+1] = [lambda: o_load(3), lambda: o_load(4), lambda: o_load(5)]
    ex[base+7] = ex.get(base+7, []) + [lambda: wo_dma(4), lambda: wo_dma(5)]
    for k in range(base, NS):
        step(k, ex.get(k, ()))
    a("s_setprio 3")
    pf = xr + 24
    def rd_p(j):
        for b3 in range(3):
            d = pf + 12*(j % 2) + 4*b3; off = wo_pos[j] + b3*64
            a(f"ds_read_b64_tr_b16 {V(d,2)}, {V(vOr)} offset:{off}\nds_read_b64_tr_b16 {V(d+2,2)}, {V(vOr)} offset:{off + 8*192}")
    assert "P0" not in vm.q
    stamp(a, 7)
    rd_p(0)
    for j in (6, 7, 8): a(o_load(j))
    a(vwait("G0"))
    for wb in range(2):
        g = (gA if wb == 0 else gB) + 1
        for i in range(48): a(f"v_mul_f32 {V(accv(0,wb)+i)}, {V(accv(0,wb)+i)}, {V(g)}")
    for j in range(9):
        a(vwait(f"O{j}", f"P{j+1}"))
        if j < 8:
            rd_p(j+1); a("s_waitcnt lgkmcnt(6)")
        else: a("s_waitcnt lgkmcnt(0)")
        if j < 3: a(wo_dma(6 + j))
        for b2 in range(2):
            for b3 in range(3): a(mfma(accv(b3, b2), pf + 12*(j % 2) + 4*b3, ofr(j) + 4*b2))
    va.release(mk)
    stamp(a, 8)
    reduce4_96x64(a, va, accv, sWave, sM0, vL, sT0, G2R)
    a(f"s_mul_i32 {S(sT0)}, {S(sDt)}, 192\ns_lshr_b32 {S(sT1)}, {S(sWave)}, 1\ns_lshl_b32 {S(sT1)}, {S(sT1)}, 5\ns_add_u32 {S(sT0)}, {S(sT0)}, {S(sT1)}")
    a(f"v_lshlrev_b32 {V(b2r)}, 16, {V(b2r)}\nv_mul_f32 {V(b2r)}, {V(b2r)}, {V(gA+1)}")
    for b3 in range(3):
        b = accv(b3, 0)
        for i in range(8): a(f"v_add_f32 {V(b+i)}, {V(b+i)}, {V(b2r)}")
        for i in range(4): a(f"v_cvt_pk_bf16_f32 {V(b+8+i)}, {V(b+2*i)}, {V(b+2*i+1)}")
        a(f"v_permlane32_swap_b32 {V(b+8)}, {V(b+10)}\nv_permlane32_swap_b32 {V(b+9)}, {V(b+11)}")
        a(f"buffer_store_dwordx4 {V(b+8,4)}, {V(vO)}, s[48:51], {S(sT0)} offen offset:{b3*64}")
    R["tailcode"] = None
    if MODE["mega"]:
        def tc():
            a(f"{Lslow}:")
            poll(a, sWS, vFl, "0", fl, sT1)
            a(f"s_branch {Lback}")
        R["tailcode"] = tc
```

```python
from m_common import *
LN_ROW = 1216
E = 72
def red8(a, v):
    m = "row_mask:0xf bank_mask:0xf"
    for p in ("quad_perm:[1,0,3,2]", "quad_perm:[2,3,0,1]", "row_half_mirror"):
        a(f"v_add_f32_dpp {V(v)}, {V(v)}, {V(v)} {p} {m}")
def unpack(a, dst, src):
    for m in range(E//2): a(f"v_lshlrev_b32 {V(dst+2*m)}, 16, {V(src+m)}\nv_and_b32 {V(dst+2*m+1)}, 0xffff0000, {V(src+m)}")
def fin(a, acc):
    a(f"v_pk_add_f32 {V(acc,2)}, {V(acc,2)}, {V(acc+2,2)}\nv_add_f32 {V(acc)}, {V(acc)}, {V(acc+1)}")
    red8(a, acc)
def psum(a, acc, src):
    a(f"v_pk_add_f32 {V(acc,2)}, {V(src,2)}, {V(src+2,2)}\nv_pk_add_f32 {V(acc+2,2)}, {V(src+4,2)}, {V(src+6,2)}")
    for i in range(8, E, 4): a(f"v_pk_add_f32 {V(acc,2)}, {V(acc,2)}, {V(src+i,2)}\nv_pk_add_f32 {V(acc+2,2)}, {V(acc+2,2)}, {V(src+i+2,2)}")
    fin(a, acc)
def x_loads(a, va, sJ):
    sT0, sT1 = 21, 22
    xr = va.alloc(36, 4); lnoff = va.alloc(); goff = va.alloc(); ltok = va.alloc()
    a(f"s_lshl_b32 {S(sT0)}, {S(sWave)}, 3\nv_lshrrev_b32 {V(ltok)}, 3, {V(vLane)}\nv_add_u32 {V(ltok)}, {S(sT0)}, {V(ltok)}")
    a(f"v_mul_u32_u24 {V(lnoff)}, 1152, {V(ltok)}\nv_and_b32 {V(goff)}, 7, {V(vLane)}\nv_lshlrev_b32 {V(goff)}, 4, {V(goff)}\nv_add_u32 {V(lnoff)}, {V(lnoff)}, {V(goff)}")
    a(f"s_mul_i32 {S(sT1)}, {S(sJ)}, {32*1152}")
    a("s_waitcnt lgkmcnt(0)")
    srd(a, 4, "x")
    for m in range(9): a(f"buffer_load_dwordx4 {V(xr+4*m,4)}, {V(lnoff)}, s[4:7], {S(sT1)} offen offset:{m*128}")
    entry_fin(a)
    return xr, goff, ltok

def body_ln(a, va, sJ):
    sT0, sT1, sT2 = 21, 22, 23
    t0, t1 = vT, vT+1
    lane, hh = vLane, vH
    mk = va.mark()
    xr, goff, ltok = x_loads(a, va, sJ)
    nz = 0
    xf = va.alloc(E, 4); ta = va.alloc(E, 4); acc = va.alloc(4, 2); mp = va.alloc(2, 2); rs = va.alloc(2, 2)
    hb = va.alloc(36, 4); tr = xf
    wad = va.alloc(); rad = va.alloc()
    a(f"v_mul_u32_u24 {V(wad)}, {LN_ROW}, {V(ltok)}\nv_add_u32 {V(wad)}, {V(wad)}, {V(goff)}")
    a(f"v_bfe_u32 {V(t1)}, {V(lane)}, 2, 2\nv_lshl_add_u32 {V(t1)}, {V(hh)}, 3, {V(t1)}\nv_mul_u32_u24 {V(rad)}, {LN_ROW}, {V(t1)}")
    a(f"v_bfe_u32 {V(t1)}, {V(lane)}, 4, 1\nv_lshl_add_u32 {V(rad)}, {V(t1)}, 5, {V(rad)}")
    a(f"v_and_b32 {V(t1)}, 3, {V(lane)}\nv_lshl_add_u32 {V(rad)}, {V(t1)}, 3, {V(rad)}")
    a(f"s_and_b32 {S(sT0)}, {S(sWave)}, 1\ns_mul_i32 {S(sT1)}, {S(sT0)}, {16*LN_ROW}\ns_lshr_b32 s24, {S(sWave)}, 1\ns_lshl_b32 s25, s24, 6\ns_add_u32 {S(sT1)}, {S(sT1)}, s25\nv_add_u32 {V(rad)}, {S(sT1)}, {V(rad)}")
    a(f"s_lshl_b32 {S(sT2)}, {S(sJ)}, 1\ns_add_u32 {S(sT2)}, {S(sT2)}, {S(sT0)}\ns_mul_i32 {S(sT2)}, {S(sT2)}, 3072")
    if WS_HT: a(f"s_add_u32 {S(sT2)}, {S(sT2)}, {WS_HT}")
    for p in range(9):
        o0, o1 = [(B // 3)*393216 + (B % 3)*1024 for B in (2*p, 2*p+1)]
        a(f"s_cmp_eq_u32 s24, 0\ns_mov_b32 s27, {o1}\ns_cselect_b32 s27, {o0}, s27\ns_add_u32 s{28+p}, s27, {S(sT2)}")
    Lp = a.label("LNP"); Ls = a.label("LNS")
    if CFG["ln_dry"]: a(f"s_mov_b32 s37, 0\n{Lp}:")
    else:
        a(f"s_waitcnt vmcnt({nz})")
        stamp(a, 1)
    unpack(a, xf, xr)
    psum(a, acc, xf)
    a(f"v_mul_f32 {V(mp)}, {f32(-1.0/576)}, {V(acc)}\nv_mov_b32 {V(mp+1)}, {V(mp)}")
    for i in range(0, E, 2): a(f"v_pk_add_f32 {V(ta+i,2)}, {V(xf+i,2)}, {V(mp,2)}")
    a(f"v_pk_mul_f32 {V(acc,2)}, {V(ta,2)}, {V(ta,2)}\nv_pk_mul_f32 {V(acc+2,2)}, {V(ta+2,2)}, {V(ta+2,2)}")
    for i in range(4, E, 4): a(f"v_pk_fma_f32 {V(acc,2)}, {V(ta+i,2)}, {V(ta+i,2)}, {V(acc,2)}\nv_pk_fma_f32 {V(acc+2,2)}, {V(ta+i+2,2)}, {V(ta+i+2,2)}, {V(acc+2,2)}")
    rnd_bf16(a, mp, mp)
    fin(a, acc)
    a(f"v_mul_f32 {V(acc)}, {f32(1.0/576)}, {V(acc)}")
    rnd_bf16(a, acc, acc)
    a(f"v_add_f32 {V(acc)}, {f32(1e-5)}, {V(acc)}")
    rnd_bf16(a, acc, acc)
    a(f"v_sqrt_f32 {V(acc)}, {V(acc)}")
    rnd_bf16(a, acc, acc)
    a(f"v_rcp_f32 {V(rs)}, {V(acc)}")
    a(f"v_mul_f32 {V(mp)}, {V(mp)}, {V(rs)}\nv_mov_b32 {V(rs+1)}, {V(rs)}\nv_mov_b32 {V(mp+1)}, {V(mp)}")
    for m in range(9):
        for i in range(8*m, 8*m+8, 2): a(f"v_pk_fma_f32 {V(ta+i,2)}, {V(xf+i,2)}, {V(rs,2)}, {V(mp,2)}")
        for i in range(4): a(f"v_cvt_pk_bf16_f32 {V(hb+4*m+i)}, {V(ta+8*m+2*i)}, {V(ta+8*m+2*i+1)}")
        a(f"ds_write_b128 {V(wad)}, {V(hb+4*m,4)} offset:{m*128}")
    a("s_waitcnt lgkmcnt(0)\ns_barrier")
    def rd(p): a(f"ds_read_b64_tr_b16 {V(tr+4*p,2)}, {V(rad)} offset:{p*128}\nds_read_b64_tr_b16 {V(tr+4*p+2,2)}, {V(rad)} offset:{p*128 + 4*LN_ROW}")
    if CFG["ln_dry"]:
        a(f"s_cmp_eq_u32 s37, 1\ns_cbranch_scc1 {Ls}\ns_mov_b32 s37, 1\ns_waitcnt vmcnt({nz})")
        stamp(a, 1)
        a(f"s_branch {Lp}\n{Ls}:")
    for p in range(7): rd(p)
    for p in range(9):
        a(f"s_waitcnt lgkmcnt({min(12, 2*(8-p))})")
        a(f"buffer_store_dwordx4 {V(tr+4*p,4)}, {V(vL)}, {S(sWS,4)}, s{28+p} offen{SC()}")
        if p + 7 < 9: rd(p+7)
    stamp(a, 9)
    signal(a, sDBG, "0", 64)
    stamp(a, 10)
    if not MODE["mega"]: a("s_barrier")
    va.release(mk)

def body_gate(a, va, sJ, mid):
    sT0 = 27
    t3 = vT+3
    mk = va.mark()
    xr, goff, ltok = x_loads(a, va, sJ)
    gr = va.alloc(36, 4); xf = va.alloc(E, 4); gf = va.alloc(E, 4); acc = va.alloc(4, 2); gg = va.alloc(2, 2)
    srd(a, 8, "gw")
    for m in range(9): a(f"buffer_load_dwordx4 {V(gr+4*m,4)}, {V(goff)}, s[8:11], 0 offen offset:{m*128}")
    a(f"v_lshlrev_b32 {V(t3)}, 3, {V(ltok)}\ns_lshl_b32 {S(sT0)}, {S(sJ)}, 8\ns_add_u32 {S(sT0)}, {S(sT0)}, {WS_G}")
    mid()
    unpack(a, gf, gr); unpack(a, xf, xr)
    for i in range(0, E, 2): a(f"v_pk_mul_f32 {V(xf+i,2)}, {V(xf+i,2)}, {V(gf+i,2)}")
    for m in range(E//2): a(f"v_cvt_pk_bf16_f32 {V(xr+m)}, {V(xf+2*m)}, {V(xf+2*m+1)}")
    unpack(a, xf, xr)
    psum(a, acc, xf)
    rnd_bf16(a, acc, acc)
    a(f"v_mul_f32 {V(acc)}, {f32(-math.log2(math.e))}, {V(acc)}\nv_exp_f32 {V(acc)}, {V(acc)}\nv_add_f32 {V(acc)}, 1.0, {V(acc)}\nv_rcp_f32 {V(acc)}, {V(acc)}")
    rnd_bf16(a, gg, acc)
    a(f"v_sub_f32 {V(gg+1)}, 1.0, {V(gg)}")
    rnd_bf16(a, gg+1, gg+1)
    a(f"s_mov_b32 exec_lo, 0x01010101\ns_mov_b32 exec_hi, 0x01010101")
    a(f"buffer_store_dwordx2 {V(gg,2)}, {V(t3)}, {S(sWS,4)}, {S(sT0)} offen{SC()}")
    a("s_mov_b64 exec, -1")
    va.release(mk)
```

```python
from m_common import *
QSLOT = 18432
def body_qkv(a, va):
    sX, sW = 4, 8
    sTg, sNg, sXoff, sWoff, sXm0, sWm0, sPart, sHg, sT0, sT1, sT2, sMain, sHs, sTail, sTs, sOdd, sScale, sRot = range(21, 39)
    t0, t1, t2, t3 = vT, vT+1, vT+2, vT+3
    lane, hh, l31 = vLane, vH, vL31
    Lv = a.label("QV"); Ldone = a.label("QDONE")
    a(f"s_and_b32 {S(sT0)}, s2, 3\ns_lshl_b32 {S(sT0)}, {S(sT0)}, 2\ns_bfe_u32 {S(sT1)}, s2, 0x20003\ns_add_u32 {S(sTg)}, {S(sT0)}, {S(sT1)}")
    a(f"s_bfe_u32 {S(sT0)}, s2, 0x10002\ns_mul_i32 {S(sT0)}, {S(sT0)}, 6\ns_lshr_b32 {S(sT1)}, s2, 5\ns_add_u32 {S(sNg)}, {S(sT0)}, {S(sT1)}")
    a(f"s_lshr_b32 {S(sPart)}, {S(sNg)}, 2\ns_and_b32 {S(sHg)}, {S(sNg)}, 3\ns_and_b32 {S(sOdd)}, {S(sNg)}, 1")
    a(f"s_mul_i32 {S(sXoff)}, {S(sTg)}, {128*1152}\ns_mul_i32 {S(sWoff)}, {S(sNg)}, 288")
    a(f"s_lshl_b32 {S(sXm0)}, {S(sWave)}, 11\ns_mul_i32 s39, {S(sWave)}, 3\ns_min_u32 s39, s39, 8\ns_lshl_b32 {S(sWm0)}, s39, 10\ns_add_u32 {S(sWm0)}, {S(sWm0)}, 8192")
    if CFG["rot"]:
        a(f"s_lshr_b32 {S(sT0)}, s2, 5\ns_mul_i32 {S(sRot)}, {S(sT0)}, 3\ns_bfe_u32 {S(sT1)}, s2, 0x20003\ns_mul_i32 {S(sT1)}, {S(sT1)}, 9\ns_add_u32 {S(sT1)}, {S(sT1)}, 1\ns_lshr_b32 {S(sT1)}, {S(sT1)}, 1")
        a(f"s_add_u32 {S(sRot)}, {S(sRot)}, {S(sT1)}\ns_sub_u32 {S(sT0)}, {S(sRot)}, 18\ns_cmp_ge_u32 {S(sRot)}, 18\ns_cselect_b32 {S(sRot)}, {S(sT0)}, {S(sRot)}")
    else: a(f"s_mov_b32 {S(sRot)}, 0")
    xsrc = va.alloc(2); wsrc = va.alloc(3)
    a(f"s_lshl_b32 {S(sT0)}, {S(sWave)}, 5")
    a(f"v_lshrrev_b32 {V(t1)}, 2, {V(lane)}\nv_add_u32 {V(t1)}, {S(sT0)}, {V(t1)}\nv_mul_u32_u24 {V(t1)}, 1152, {V(t1)}")
    a(f"v_lshrrev_b32 {V(t2)}, 4, {V(lane)}\nv_and_b32 {V(t3)}, 3, {V(lane)}\nv_xor_b32 {V(t2)}, {V(t2)}, {V(t3)}")
    a(f"v_lshl_add_u32 {V(xsrc)}, {V(t2)}, 4, {V(t1)}\nv_add_u32 {V(xsrc+1)}, {16*1152-1024}, {V(xsrc)}")
    a(f"s_lshl_b32 {S(sT0)}, s39, 6\ns_cmp_eq_u32 {S(sOdd)}, 1\ns_cselect_b32 {S(sT1)}, 2, 16\ns_add_u32 {S(sT2)}, {S(sT1)}, 2")
    for i in range(3):
        a(f"v_add_u32 {V(t1)}, {S(sT0)}, {V(lane)}")
        if i: a(f"v_add_u32 {V(t1)}, {64*i}, {V(t1)}")
        a(f"v_mul_u32_u24 {V(t2)}, 3277, {V(t1)}\nv_lshrrev_b32 {V(t2)}, 16, {V(t2)}")
        a(f"v_mul_u32_u24 {V(t3)}, 20, {V(t2)}\nv_sub_u32 {V(t3)}, {V(t1)}, {V(t3)}")
        a(f"v_mul_u32_u24 {V(t2)}, 3456, {V(t2)}\nv_lshl_add_u32 {V(t2)}, {V(t3)}, 4, {V(t2)}")
        if i: a(f"v_subrev_u32 {V(t2)}, {1024*i}, {V(t2)}")
        a(f"v_cmp_le_u32 vcc, {S(sT1)}, {V(t3)}\nv_mov_b32 {V(t1)}, {OOB}\nv_cndmask_b32 {V(t1)}, {V(t2)}, {V(t1)}, vcc")
        a(f"v_cmp_le_u32 vcc, {S(sT2)}, {V(t3)}\nv_subrev_u32 {V(t2)}, 32, {V(t2)}\nv_cndmask_b32 {V(wsrc+i)}, {V(t1)}, {V(t2)}, vcc")
    for idx in range(768): assert (idx*3277) >> 16 == idx // 20
    a(f"s_lshl_b32 s44, {S(sRot)}, 6\ns_add_u32 s44, s44, {S(sXoff)}\ns_mul_i32 s45, {S(sRot)}, {32*3456}\ns_add_u32 s45, s45, {S(sWoff)}")
    a(f"s_cmp_lt_u32 {S(sWave)}, 2\ns_cselect_b32 s46, 1, 0\ns_mov_b32 s47, 0")
    def dma_stage(st, vm):
        slot = st % 4
        Ls = a.label("QS")
        vm.issue(f"st{st}", 4)
        return [f"s_add_u32 m0, {S(sXm0)}, {slot*QSLOT}\ns_add_u32 {S(sRot)}, {S(sRot)}, 1\nbuffer_load_dwordx4 {V(xsrc)}, {S(sX,4)}, s44 offen{NT('q')} lds",
                f"buffer_load_dwordx4 {V(xsrc+1)}, {S(sX,4)}, s44 offen offset:1024{NT('q')} lds\ns_add_u32 m0, {S(sWm0)}, {slot*QSLOT}\ns_add_u32 s44, s44, 64",
                f"buffer_load_dwordx4 {V(wsrc)}, {S(sW,4)}, s45 offen{NT('q')} lds",
                f"buffer_load_dwordx4 {V(wsrc+1)}, {S(sW,4)}, s45 offen offset:1024{NT('q')} lds\ns_cmp_eq_u32 s46, 0",
                f"s_cbranch_scc1 {Ls}\nbuffer_load_dwordx4 {V(wsrc+2)}, {S(sW,4)}, s45 offen offset:2048{NT('q')} lds\n{Ls}:\ns_add_u32 s45, s45, {32*3456}\ns_cmp_eq_u32 {S(sRot)}, 18\n"
                + (f"s_cselect_b32 s44, {S(sXoff)}, s44\ns_cselect_b32 s45, {S(sWoff)}, s45\ns_add_u32 s47, s47, 1\ns_cmp_eq_u32 s47, 18\n" if CFG["rot"] else "")
                + f"s_cselect_b32 s44, {OOB}, s44\ns_cselect_b32 s45, {OOB}, s45"]
    a("s_waitcnt lgkmcnt(0)")
    entry_fin(a)
    for r, n in ((sX, "x"), (sW, "wqkv")): srd(a, r, n)
    vm = VmTrack()
    for st in range(4):
        for x in dma_stage(st, vm): a(x)
    xrd = va.alloc(2); wA = va.alloc(); wB = va.alloc(); wT = va.alloc()
    a(f"v_bfe_u32 {V(t1)}, {V(l31)}, 2, 2\nv_lshlrev_b32 {V(t2)}, 6, {V(l31)}\nv_add_u32 {V(t2)}, {S(sXm0)}, {V(t2)}")
    for ks in range(2):
        a(f"v_add_u32 {V(t3)}, {2*ks}, {V(hh)}\nv_xor_b32 {V(t3)}, {V(t3)}, {V(t1)}\nv_lshl_add_u32 {V(xrd+ks)}, {V(t3)}, 4, {V(t2)}")
    a(f"v_bfe_u32 {V(t1)}, {V(lane)}, 2, 2\nv_lshl_add_u32 {V(t1)}, {V(hh)}, 3, {V(t1)}\nv_mul_u32_u24 {V(t1)}, 320, {V(t1)}\nv_add_u32 {V(t1)}, 8192, {V(t1)}")
    a(f"v_bfe_u32 {V(t2)}, {V(lane)}, 4, 1\nv_and_b32 {V(t3)}, 3, {V(lane)}")
    a(f"v_mul_u32_u24 {V(wA)}, 288, {V(t2)}\nv_lshl_add_u32 {V(wA)}, {V(t3)}, 3, {V(wA)}\nv_add_u32 {V(wA)}, {V(wA)}, {V(t1)}")
    a(f"s_lshl_b32 {S(sT0)}, {S(sOdd)}, 5\ns_add_u32 {S(sT0)}, {S(sT0)}, 32\nv_add_u32 {V(t1)}, {S(sT0)}, {V(t1)}")
    a(f"v_lshl_add_u32 {V(wB)}, {V(t2)}, 5, {V(t1)}\nv_lshl_add_u32 {V(wB)}, {V(t3)}, 3, {V(wB)}\nv_add_u32 {V(wB)}, 8, {V(wB)}")
    a(f"v_lshl_add_u32 {V(t2)}, {V(t2)}, 2, {V(t3)}\nv_lshrrev_b32 {V(t2)}, 1, {V(t2)}\ns_cmp_eq_u32 {S(sPart)}, 2\ns_cselect_b64 vcc, -1, 0\nv_cndmask_b32 {V(t3)}, {V(t3)}, {V(t2)}, vcc")
    a(f"v_mul_u32_u24 {V(wT)}, 72, {V(t3)}\nv_add_u32 {V(wT)}, {V(wT)}, {V(t1)}")
    acc = va.alloc(80, 4); xf = va.alloc(8, 4); wf = va.alloc(40, 4); pk = va.alloc(8, 4); so = va.alloc(); so2 = va.alloc(); so3 = va.alloc(); f0a = va.alloc(); f0v = va.alloc()
    a(f"v_mov_b32 {V(f0a)}, 0")
    a(f"s_lshl_b32 {S(sT2)}, {S(sTg)}, 2\ns_add_u32 {S(sT2)}, {S(sT2)}, {S(sWave)}")
    def rd_x(k):
        st, ks = divmod(k, 2)
        a(f"ds_read_b128 {V(xf+4*(k%2),4)}, {V(xrd+ks)} offset:{(st%4)*QSLOT}")
    def rd_w(k, j):
        st, ks = divmod(k, 2)
        base = wA if j == 0 else (wT if j == 4 else wB)
        off = (st % 4)*QSLOT + ks*5120 + (72*(j-1) if 1 <= j <= 3 else 0)
        d = wf + 20*(k % 2) + 4*j
        a(f"ds_read_b64_tr_b16 {V(d,2)}, {V(base)} offset:{off}")
        a(f"ds_read_b64_tr_b16 {V(d+2,2)}, {V(base)} offset:{off+1280}")
    def mainloop(vm, vpart):
        for i in range(80): a(f"v_mov_b32 {V(acc+i)}, 0")
        a(f"s_waitcnt vmcnt({vm.wait('st0')})\ns_barrier")
        stamp(a, 1)
        rd_x(0)
        for j in range(5): rd_w(0, j)
        dm = []
        def step(k, issue):
            st, ks = divmod(k, 2)
            last = k == 35
            sync = ks == 1 and not last
            if sync:
                assert not dm
                a(f"s_waitcnt vmcnt({vm.wait(f'st{st+1}')}) lgkmcnt(0)")
            else: a("s_waitcnt lgkmcnt(0)")
            for j in range(5):
                x = xf + 4*(k % 2); w = wf + 20*(k % 2) + 4*j
                a(mfma(acc+16*j, x, w) if vpart else mfma(acc+16*j, w, x))
                if sync and j == 0:
                    a("s_barrier")
                    if issue: dm.extend(dma_stage(st + 4, vm))
                    elif MODE["mega"]:
                        a(f"buffer_load_dword {V(f0v)}, {V(f0a)}, {S(sDBG,4)}, 0 offen offset:132 sc1"); vm.issue("f0")
                if not last:
                    if j == 0: rd_x(k+1); rd_w(k+1, 0)
                    if j == 1: rd_w(k+1, 1); rd_w(k+1, 2)
                    if j == 2: rd_w(k+1, 3); rd_w(k+1, 4)
                if dm and j in ((0, 3, 4) if sync else (2, 3)): a(dm.pop(0))
        step(0, True)
        L = a.label("QL")
        a(f"s_mov_b32 s48, 4\n.p2align 4\n{L}:")
        q0 = list(vm.q)
        for k in range(1, 9): step(k, True)
        assert ["st" + str(int(x[2:]) - 4) for x in vm.q] == q0
        a(f"s_sub_u32 s48, s48, 1\ns_cmp_lg_u32 s48, 0\ns_cbranch_scc1 {L}")
        vm.q = ["st" + str(int(x[2:]) + 16) for x in q0]
        for k in range(33, 36): step(k, False)
        stamp(a, 2)
        if MODE["mega"] and CFG["gate_q"] == 99:
            Lh = a.label("QH")
            a(f"s_lshr_b32 {S(sT0)}, s2, 3\ns_or_b32 {S(sT0)}, {S(sT0)}, {S(sWave)}\ns_cmp_lg_u32 {S(sT0)}, 0\ns_cbranch_scc1 {Lh}")
            a(f"s_waitcnt vmcnt(0)\nv_readfirstlane_b32 {S(sT1)}, {V(f0v)}\ns_cmp_lg_u32 {S(sT1)}, 1\ns_cbranch_scc1 {Lh}")
            a(f"s_lshl_b32 {S(sT0)}, s2, 8\ns_add_u32 {S(sT0)}, {S(sT0)}, {WS_FL}\ns_mov_b64 exec, 1\nbuffer_store_dword {V(f0v)}, {V(f0a)}, {S(sWS,4)}, {S(sT0)} offen offset:192 sc1\ns_mov_b64 exec, -1\n{Lh}:\ns_nop 7")
    heads = [(0, 7), (1, 2), (3, 4), (5, 6)]
    vm2 = copy.deepcopy(vm)
    a(f"s_cmp_eq_u32 {S(sPart)}, 2\ns_cbranch_scc1 {Lv}")
    Lk = a.label("QK"); Lqk = a.label("QQK")
    a(f"s_cmp_eq_u32 {S(sPart)}, 1\ns_cbranch_scc1 {Lk}")
    a(f"s_lshl_b32 {S(sMain)}, {S(sHg)}, 19\ns_lshl_b32 {S(sT0)}, {S(sT2)}, 10\ns_add_u32 {S(sMain)}, {S(sMain)}, {S(sT0)}\ns_add_u32 {S(sMain)}, {S(sMain)}, {WS_QF}")
    a(f"s_mov_b32 {S(sHs)}, 65536\ns_mov_b32 {S(sTs)}, 8192")
    a(f"s_lshl_b32 {S(sTail)}, {S(sHg)}, 16\ns_lshl_b32 {S(sT0)}, {S(sT2)}, 7\ns_add_u32 {S(sTail)}, {S(sTail)}, {S(sT0)}\ns_add_u32 {S(sTail)}, {S(sTail)}, {WS_QT}")
    a(f"s_mov_b32 {S(sScale)}, {f32(QSCALE)}\ns_branch {Lqk}")
    a(f"{Lk}:")
    a(f"s_mul_i32 {S(sMain)}, {S(sHg)}, {8*KVH}\ns_lshr_b32 {S(sT0)}, {S(sT2)}, 3\ns_mul_i32 {S(sT0)}, {S(sT0)}, {KVCH}\ns_add_u32 {S(sMain)}, {S(sMain)}, {S(sT0)}")
    a(f"s_add_u32 {S(sMain)}, {S(sMain)}, {WS_KV}\ns_and_b32 {S(sT0)}, {S(sT2)}, 7\ns_lshl_b32 {S(sT1)}, {S(sT0)}, 7")
    a(f"s_add_u32 {S(sTail)}, {S(sMain)}, {S(sT1)}\ns_add_u32 {S(sTail)}, {S(sTail)}, 8192")
    a(f"s_lshl_b32 {S(sT0)}, {S(sT0)}, 10\ns_add_u32 {S(sMain)}, {S(sMain)}, {S(sT0)}")
    a(f"s_mov_b32 {S(sHs)}, {KVH}\ns_mov_b32 {S(sTs)}, {KVH}\ns_mov_b32 {S(sScale)}, 1.0")
    a(f"{Lqk}:")
    a(f"v_mul_lo_u32 {V(so2)}, {V(hh)}, {S(sTs)}\nv_lshlrev_b32 {V(so2)}, 1, {V(so2)}\nv_lshl_add_u32 {V(so2)}, {V(l31)}, 2, {V(so2)}")
    mainloop(vm, False)
    for j in range(4):
        for hf in range(2):
            b = acc + 16*j + 8*hf; p = pk + 4*hf
            a(f"s_mul_i32 {S(sT0)}, {S(sHs)}, {heads[j][hf]}\ns_add_u32 {S(sT0)}, {S(sT0)}, {S(sMain)}")
            for i in range(8): a(f"v_mul_f32 {V(b+i)}, {S(sScale)}, {V(b+i)}")
            for i in range(4): a(f"v_cvt_pk_bf16_f32 {V(p+i)}, {V(b+2*i)}, {V(b+2*i+1)}")
            a(f"buffer_store_dwordx4 {V(p,4)}, {V(vL)}, {S(sWS,4)}, {S(sT0)} offen{SC()}")
    b = acc + 64
    for i in range(8): a(f"v_mul_f32 {V(b+i)}, {S(sScale)}, {V(b+i)}")
    for i in range(4): a(f"v_cvt_pk_bf16_f32 {V(b+8+i)}, {V(b+2*i)}, {V(b+2*i+1)}")
    for i, mult in enumerate((0, 1, 4, 5)):
        a(f"s_mul_i32 {S(sT0)}, {S(sTs)}, {mult}\ns_add_u32 {S(sT0)}, {S(sT0)}, {S(sTail)}")
        a(f"buffer_store_dword {V(b+8+i)}, {V(so2)}, {S(sWS,4)}, {S(sT0)} offen{SC()}")
    a(f"s_branch {Ldone}")
    a(f"{Lv}:")
    a(f"s_mul_i32 {S(sMain)}, {S(sHg)}, {8*KVH}\ns_lshr_b32 {S(sT0)}, {S(sT2)}, 3\ns_mul_i32 {S(sT0)}, {S(sT0)}, {KVCH}\ns_add_u32 {S(sMain)}, {S(sMain)}, {S(sT0)}")
    a(f"s_and_b32 {S(sT0)}, {S(sT2)}, 7\ns_mul_i32 {S(sT0)}, {S(sT0)}, 1280\ns_add_u32 {S(sMain)}, {S(sMain)}, {S(sT0)}\ns_add_u32 {S(sMain)}, {S(sMain)}, {WS_KV + 9216}")
    a(f"v_bfe_u32 {V(t1)}, {V(lane)}, 4, 1\nv_lshlrev_b32 {V(t2)}, 8, {V(hh)}\nv_and_b32 {V(t3)}, 15, {V(lane)}\nv_lshl_add_u32 {V(t0)}, {V(t3)}, 4, {V(t2)}")
    a(f"v_mul_u32_u24 {V(so)}, {7*KVH}, {V(t1)}\nv_add_u32 {V(so)}, {V(so)}, {V(t0)}")
    a(f"v_mul_u32_u24 {V(so3)}, {KVH}, {V(t1)}\nv_add_u32 {V(so3)}, {V(so3)}, {V(t0)}")
    a(f"v_lshrrev_b32 {V(t1)}, 2, {V(l31)}\nv_mul_u32_u24 {V(so2)}, {KVH}, {V(t1)}\nv_lshl_add_u32 {V(so2)}, {V(hh)}, 6, {V(so2)}")
    a(f"v_and_b32 {V(t1)}, 1, {V(t1)}\nv_lshlrev_b32 {V(t1)}, 1, {V(t1)}\nv_and_b32 {V(t3)}, 3, {V(lane)}\nv_xor_b32 {V(t1)}, {V(t1)}, {V(t3)}")
    a(f"v_lshl_add_u32 {V(so2)}, {V(t1)}, 4, {V(so2)}\nv_add_u32 {V(so2)}, 512, {V(so2)}")
    a(f"v_mov_b32 {V(t2)}, 0x3f803f80\nv_cmp_eq_u32 vcc, 3, {V(t1)}\nv_cndmask_b32 {V(t0)}, {V(t2)}, 0, vcc\nv_cmp_lt_u32 vcc, 1, {V(t1)}")
    mainloop(vm2, True)
    for j in range(4):
        a(f"s_add_u32 {S(sT0)}, {S(sMain)}, {heads[j][0]*KVH}")
        for grp in range(2):
            b = acc + 16*j + 8*grp; p = pk + 4*grp
            for i in range(4): a(f"v_cvt_pk_bf16_f32 {V(p+i)}, {V(b+2*i)}, {V(b+2*i+1)}")
            a(f"buffer_store_dwordx4 {V(p,4)}, {V(so if j == 0 else so3)}, {S(sWS,4)}, {S(sT0)} offen offset:{grp*640}{SC()}")
    for grp in range(2):
        b = acc + 64 + 8*grp; p = pk + 4*grp
        for i in range(4):
            a(f"v_cvt_pk_bf16_f32 {V(p+i)}, {V(b+2*i)}, {V(b+2*i+1)}")
            a(f"v_cndmask_b32 {V(p+i)}, {V(p+i)}, {V(t0)}, vcc")
        a(f"buffer_store_dwordx4 {V(p,4)}, {V(so2)}, {S(sWS,4)}, {S(sMain)} offen offset:{grp*640}{SC()}")
    a(f"{Ldone}:")
    a(f"s_lshl_b32 {S(sT0)}, {S(sHg)}, 8\ns_add_u32 {S(sT0)}, {S(sT0)}, {WS_FL + FQ_G*256}")
    if MODE["mega"]:
        Lok = a.label("QF0")
        a(f"s_waitcnt vmcnt(0)\nv_cmp_ne_u32 vcc, 1, {V(f0v)}\ns_nop 4\ns_cbranch_vccz {Lok}")
        poll_f0(a, sT1, ln=False)
        a(f"{Lok}:")
    if MODE["mega"] and CFG["gate_q"] == 99:
        Lh = a.label("QH")
        a(f"s_lshr_b32 {S(sT1)}, s2, 3\ns_or_b32 {S(sT1)}, {S(sT1)}, {S(sWave)}\ns_cmp_lg_u32 {S(sT1)}, 0\ns_cbranch_scc1 {Lh}")
        a(f"s_lshl_b32 {S(sT1)}, s2, 8\ns_add_u32 {S(sT1)}, {S(sT1)}, {WS_FL}\nv_mov_b32 {V(f0v)}, 1\ns_mov_b64 exec, 1\nbuffer_store_dword {V(f0v)}, {V(f0a)}, {S(sWS,4)}, {S(sT1)} offen offset:192 sc1\ns_mov_b64 exec, -1\n{Lh}:")
    stamp(a, 6)
    signal(a, sWS, S(sT0), 48, early=CFG['gate_q'] % 99)
    stamp(a, 7)

def prefetch_xw(a, d):
    t0, t1, t2 = vT, vT+1, vT+2
    srd(a, 4, "x"); srd(a, 8, "wqkv")
    a(f"s_lshr_b32 s21, s2, 3\ns_lshl_b32 s21, s21, 2\ns_add_u32 s21, s21, {S(sWave)}")
    a(f"s_lshl_b32 s22, s21, 6\nv_add_u32 {V(t0)}, s22, {V(vLane)}")
    a(f"v_mul_u32_u24 {V(t1)}, 18725, {V(t0)}\nv_lshrrev_b32 {V(t1)}, 18, {V(t1)}")
    a(f"v_mul_u32_u24 {V(t2)}, 14, {V(t1)}\nv_sub_u32 {V(t2)}, {V(t0)}, {V(t2)}\nv_mul_u32_u24 {V(t1)}, 3456, {V(t1)}\nv_lshl_add_u32 {V(t1)}, {V(t2)}, 7, {V(t1)}")
    a(f"s_bfe_u32 s23, s2, 0x10002\ns_mul_i32 s23, s23, {13*128}\ns_add_u32 s23, s23, {137*3456}")
    a(f"v_and_b32 {V(t2)}, 511, {V(t0)}\nv_mul_u32_u24 {V(t2)}, 1152, {V(t2)}\nv_lshrrev_b32 {V(t0)}, 9, {V(t0)}\nv_lshl_add_u32 {V(t2)}, {V(t0)}, 7, {V(t2)}")
    a(f"s_and_b32 s24, s2, 3\ns_mul_i32 s24, s24, {512*1152}\ns_add_u32 s24, s24, 256\ns_cmp_ge_u32 s21, 56\ns_cselect_b32 s24, {OOB}, s24")
    a(f"buffer_load_dword {V(d)}, {V(t2)}, s[4:7], s24 offen")
    a(f"buffer_load_dword {V(d)}, {V(t1)}, s[8:11], s23 offen")

def touch_w5(a, d):
    L = a.label("TW5")
    a(f"s_cmp_ge_u32 {S(sWave)}, 2\ns_cbranch_scc1 {L}")
    srd(a, 8, "wqkv")
    a(f"s_lshr_b32 s21, s2, 5\ns_mul_i32 s22, s21, 3\ns_bfe_u32 s23, s2, 0x20003\ns_mul_i32 s23, s23, 9\ns_add_u32 s23, s23, 1\ns_lshr_b32 s23, s23, 1\ns_add_u32 s22, s22, s23\ns_add_u32 s22, s22, 4")
    a(f"s_sub_u32 s23, s22, 18\ns_cmp_ge_u32 s22, 18\ns_cselect_b32 s22, s23, s22\ns_lshl_b32 s22, s22, 1\ns_add_u32 s22, s22, {S(sWave)}\ns_mul_i32 s22, s22, {16*3456}")
    a(f"s_bfe_u32 s23, s2, 0x10002\ns_mul_i32 s23, s23, 6\ns_add_u32 s23, s23, s21\ns_mul_i32 s23, s23, 288\ns_add_u32 s22, s22, s23")
    a(f"v_lshrrev_b32 {V(vT)}, 2, {V(vLane)}\nv_mul_u32_u24 {V(vT)}, 3456, {V(vT)}\nv_and_b32 {V(vT+1)}, 3, {V(vLane)}\nv_mul_u32_u24 {V(vT+1)}, 92, {V(vT+1)}\nv_add_u32 {V(vT)}, {V(vT)}, {V(vT+1)}")
    a(f"buffer_load_dword {V(d)}, {V(vT)}, s[8:11], s22 offen\n{L}:")
```

```python
import sys
from m_common import *
from m_qkv import body_qkv, prefetch_xw, touch_w5
from m_ln import body_ln, body_gate
from m_g1 import *
from m_g2 import *
from m_attn import body_attn
from gen import build

def w1_touch(a, d, sN, flag):
    a(f"s_mul_i32 s21, {S(sN)}, 205\ns_lshr_b32 s21, s21, 10\ns_mul_i32 s22, s21, 5\ns_sub_u32 s22, {S(sN)}, s22\ns_lshl_b32 s22, s22, 8")
    a(f"s_mul_i32 s21, s21, {32*9216}\ns_add_u32 s21, s21, s22\ns_add_u32 s21, s21, s24")
    a(f"buffer_load_dword {V(d)}, {V(vT)}, s[4:7], s21 offen{flag}")
    for x in range(340): assert (x*205) >> 10 == x // 5
def w1_touch_setup(a):
    srd(a, 4, "w1")
    a(f"s_and_b32 s24, s2, 7\ns_mul_i32 s24, s24, 9\ns_lshr_b32 s24, s24, 1\ns_lshl_b32 s24, s24, 8")
    a(f"v_lshrrev_b32 {V(vT)}, 1, {V(vLane)}\nv_mul_u32_u24 {V(vT)}, 9216, {V(vT)}\nv_and_b32 {V(vT+1)}, 1, {V(vLane)}\nv_lshl_add_u32 {V(vT)}, {V(vT+1)}, 7, {V(vT)}")

def w1_first(a):
    a("s_waitcnt lgkmcnt(0)")
    w1_touch_setup(a)
    a(f"s_lshr_b32 s25, s26, 3\ns_lshl_b32 s25, s25, 2\ns_add_u32 s25, s25, {S(sWave)}")
    for r in range(CFG["pf_first"]):
        w1_touch(a, V0FREE, 25, "")
        a("s_add_u32 s25, s25, 32")

def helper(a, d):
    sT0, sT1, sI, sN = 21, 22, 23, 25
    t = vT
    a(f"s_sub_u32 {S(sI)}, s2, 216\ns_lshr_b32 {S(sI)}, {S(sI)}, 3\ns_lshl_b32 {S(sI)}, {S(sI)}, 2\ns_add_u32 {S(sI)}, {S(sI)}, {S(sWave)}")
    if CFG["pf_w1"]:
        w1_touch_setup(a)
        n0 = 32 * CFG["pf_w1"] + 24*CFG["pf_b"]*CFG["pf_bw"]
        for r in range((320 - n0 + 19) // 20):
            if r == CFG["pf_pause"] and MODE["mega"]:
                stamp(a, 2)
                a(f"v_mov_b32 {V(t+2)}, 4")
                poll(a, sDBG, t+2, "0", t+3, sT1)
                a(f"s_bfe_u32 {S(sT0)}, s2, 0x20001\ns_lshl_b32 {S(sT0)}, {S(sT0)}, 8\ns_add_u32 {S(sT0)}, {S(sT0)}, {WS_FL+FQ_G*256}\nv_mov_b32 {V(t+2)}, 0")
                poll(a, sWS, t+2, S(sT0), t+3, sT1)
            a(f"s_add_u32 {S(sN)}, {S(sI)}, {n0 + 20*r}")
            w1_touch(a, d, sN, "")
            a(f"s_waitcnt vmcnt({CFG['pfw']})")
    stamp(a, 3)
    srd(a, 4, "w2"); srd(a, 8, "wo")
    a(f"s_and_b32 {S(sT0)}, {S(sI)}, 3\ns_mul_i32 {S(sT0)}, {S(sT0)}, {1152*4096}\ns_lshr_b32 {S(sT1)}, {S(sI)}, 2\ns_lshl_b32 {S(sT1)}, {S(sT1)}, 16\ns_add_u32 {S(sT0)}, {S(sT0)}, {S(sT1)}")
    a(f"s_and_b32 {S(sT1)}, s2, 7\ns_lshl_b32 {S(sT1)}, {S(sT1)}, 9\ns_add_u32 {S(sT0)}, {S(sT0)}, {S(sT1)}")
    a(f"v_lshrrev_b32 {V(t)}, 2, {V(vLane)}\nv_lshlrev_b32 {V(t)}, 12, {V(t)}\nv_and_b32 {V(t+1)}, 3, {V(vLane)}\nv_lshl_add_u32 {V(t)}, {V(t+1)}, 7, {V(t)}")
    for r in range(15 if CFG["pf_w2"] else 0):
        a(f"buffer_load_dword {V(d)}, {V(t)}, s[4:7], {S(sT0)} offen\ns_add_u32 {S(sT0)}, {S(sT0)}, {5*65536}\ns_waitcnt vmcnt({CFG['pfw']})")
    a(f"s_lshl_b32 {S(sT0)}, {S(sI)}, 13\nv_lshlrev_b32 {V(t)}, 7, {V(vLane)}")
    for r in range(5 if CFG["pf_wo"] else 0):
        a(f"buffer_load_dword {V(d)}, {V(t)}, s[8:11], {S(sT0)} offen\ns_add_u32 {S(sT0)}, {S(sT0)}, {20*8192}\ns_waitcnt vmcnt({CFG['pfw']})")

def kern(a, name, phases, kidx):
    kernel_begin(a, name)
    Lend = a.label("END"); LA = a.label("ROLEA"); Lln = a.label("LN"); Lg1 = a.label("G1"); Latt = a.label("ATT0"); Lhelp = a.label("HELP"); Lfin = a.label("FIN")
    Lnog2 = a.label("NOG2")
    hi = 0
    grid = 512 if phases != [3] else 256
    a(f"s_cmp_ge_u32 s2, {grid}\ns_cbranch_scc1 {Lend}")
    entry(a)
    a("s_lshr_b32 s3, s2, 8\ns_and_b32 s2, s2, 255\ns_setprio 3")
    pd = V0FREE
    if 1 not in phases:
        a("s_waitcnt lgkmcnt(0)"); entry_fin(a)
    if phases != [3]: a(f"s_cmp_eq_u32 s3, 1\ns_cbranch_scc1 {LA}")
    if 1 in phases: a(f"s_cmp_ge_u32 s2, 192\ns_cbranch_scc1 {Lln}")
    va = RegAlloc("v", V0FREE+1, 254); vm = VmTrack(); R1 = {}; R2 = {}
    mk = va.mark()
    if 1 in phases:
        a("s_waitcnt lgkmcnt(0)"); entry_fin(a)
        if MODE["mega"]:
            Lz = a.label("NOZ")
            a(f"s_lshl_b32 s21, s2, 2\ns_add_u32 s21, s21, {S(sWave)}\ns_cmp_lg_u32 s21, 1\ns_cbranch_scc1 {Lz}")
            zero_sync(a)
            a(f"{Lz}:")
        if CFG["pf_xw"]: prefetch_xw(a, pd)
        if CFG["tw5"]: touch_w5(a, pd)
        if CFG["pf_b"]:
            Lx = a.label("PFB"); nw = CFG["pf_bw"]
            a(f"s_cmp_lt_u32 {S(sWave)}, {4-nw}\ns_cbranch_scc1 {Lx}")
            w1_touch_setup(a)
            a(f"s_lshr_b32 s25, s2, 3\ns_mul_i32 s25, s25, {nw}\ns_add_u32 s25, s25, {S(sWave)}\ns_sub_u32 s25, s25, {4-nw}")
            for r in range(CFG["pf_b"]):
                w1_touch(a, pd, 25, "")
                a(f"s_add_u32 s25, s25, {24*nw}\ns_waitcnt vmcnt(0)")
            stamp(a, 1)
            a(f"{Lx}:")
    elif 2 in phases: a(f"s_cmp_ge_u32 s2, 216\ns_cbranch_scc1 {Lhelp}")
    if 2 in phases:
        a(f"{Lg1}:")
        g1_alloc(va, R1)
        srd(a, 4, "w1"); srd(a, 8, "b1")
        g1_setup(a, va, R1)
        if 1 in phases:
            def gate_q():
                a(f"s_bfe_u32 {S(R1['sT0'])}, s2, {0x30000 if CFG['gate_q'] == 99 else 0x20001}\ns_lshl_b32 {S(R1['sT0'])}, {S(R1['sT0'])}, 8\ns_add_u32 {S(R1['sT0'])}, {S(R1['sT0'])}, {WS_FL+FQ_G*256}\nv_mov_b32 {V(vT)}, 0")
                poll(a, sWS, vT, S(R1['sT0']), vT+1, R1['sT1'], off=192)
            poll_f0(a, R1["sT1"], then=gate_q if CFG["gate_q"] else None); a("s_barrier")
            stamp(a, 2)
        g1_main(a, va, R1, vm)
        a("s_barrier")
        g1_epilogue(a, va, R1, vm)
        stamp(a, 5)
        va.release(mk)
    if 3 in phases:
        srd(a, 4, "w2"); srd(a, 8, "wo"); srd(a, 44, "b2"); srd(a, 48, "out")
        a(f"s_cmp_ge_u32 s2, 192\ns_cbranch_scc1 {Lnog2}")
        g2_setup(a, va, R2, vm)
        if 2 in phases: signal(a, sWS, "s34", 9, vm.wait("ust"))
        g2_main(a, va, R2, vm)
    a(f"{Lfin}:")
    prof_end(a, kidx)
    a("s_endpgm")
    if R2.get("tailcode"): R2["tailcode"]()
    if 3 in phases:
        a(f"{Lnog2}:")
        if 2 in phases: signal(a, sWS, "s34", 9)
        a(f"s_branch {Lfin}")
    hi = max(hi, va.hi)
    if 1 in phases:
        a(f"{Lln}:")
        va = RegAlloc("v", V0FREE+1, 254)
        a("s_sub_u32 s26, s2, 192")
        body_ln(a, va, 26)
        hi = max(hi, va.hi)
        if 2 in phases: a(f"s_cmp_lt_u32 s2, 216\ns_cbranch_scc1 {Lg1}")
        else: a(f"s_branch {Lfin}")
    if 2 in phases:
        a(f"{Lhelp}:")
        helper(a, pd)
        a(f"s_branch {Lfin}")
    if phases != [3]:
        a(f"{LA}:")
        if 1 in phases:
            va = RegAlloc("v", V0FREE, 254)
            Lq = a.label("QKV")
            a(f"s_cmp_lt_u32 s2, 192\ns_cbranch_scc1 {Lq}\ns_sub_u32 s26, s2, 192\ns_setprio 1")
            va.alloc()
            def rounds(lo, hi):
                if lo == 0:
                    a("s_waitcnt vmcnt(0)")
                    w1_touch_setup(a)
                    a(f"s_lshr_b32 s25, s26, 3\ns_lshl_b32 s25, s25, 2\ns_add_u32 s25, s25, {S(sWave)}\ns_add_u32 s25, s25, {24*CFG['pf_b']*CFG['pf_bw']}")
                for r in range(lo, hi):
                    w1_touch(a, pd, 25, "")
                    a(f"s_add_u32 s25, s25, 32")
                    if r + 1 < hi: a(f"s_waitcnt vmcnt({CFG['pfwa']})")
            body_gate(a, va, 26, lambda: rounds(0, min(CFG["pf_w1"], CFG["pf_first"])))
            stamp(a, 1)
            n1 = min(CFG["pf_w1"], CFG["pf_first"]); n2 = min(CFG["pf_w1"], n1 + CFG["pf_mid"])
            a(f"s_waitcnt vmcnt({CFG['pfwa']})")
            rounds(n1, n2)
            a(f"v_mov_b32 {V(pd+1)}, {V(vT)}")
            poll_f0(a, 22, ln=False)
            a(f"s_mov_b32 s21, {WS_FL + FG_G*256}")
            signal(a, sWS, "s21", 64)
            a(f"v_mov_b32 {V(vT)}, {V(pd+1)}")
            stamp(a, 2)
            if n2 < CFG["pf_w1"]: rounds(max(n2, 1) if n2 else 0, CFG["pf_w1"])
            a(f"s_branch {Latt}\n{Lq}:\ns_setprio {CFG['prio_q']}")
            body_qkv(a, va)
            hi = max(hi, va.hi)
        a(f"{Latt}:")
        a(f"s_setprio {CFG['prio_att']}")
        if 2 in phases and not CFG['noatt']:
            va = RegAlloc("v", V0FREE, 254)
            body_attn(a, va, kidx)
            hi = max(hi, va.hi)
        else:
            a(f"s_branch {Lfin}")
    a(f"{Lend}:\ns_endpgm")
    return dict(name=name, grid=grid, block=256, lds=LDS_BYTES, desc=kernel_desc(name, max(hi, 136), 0, 96))

if __name__ == "__main__":
    path = "gated_mix__softmax_full_mha__mixer_token_mlp__prompt.s"
    CFG.update(prio_att=1, prio_q=3, pf_w1=5, pf_first=2, pf_mid=0, pfwa=0, pf_w2=1, pf_wo=1, pfw=0, rot=1, pf_xw=0, ln_dry=0, pf_b=0, pf_bw=1, gate_q=0, tw5=1, pf_pause=99, fo_ck=6, nt_q=0, rot1=0, win1=0, rot2=0, win2=0, noatt=0, nt_w1=0, prio_g1=2, prio_g2=0)
    for arg in sys.argv[1:]:
        if "=" in arg:
            k, v = arg.split("=")
            if k == "out": path = v
            else: CFG[k] = int(v)
    if "--prof" in sys.argv: prof_enable()
    if CFG.get("multi"):
        MODE["mega"] = False
        build([lambda a: kern(a, "ph1_kernel", [1], 0), lambda a: kern(a, "ph2_kernel", [2], 1), lambda a: kern(a, "ph3_kernel", [3], 2)], path)
    else:
        build([lambda a: kern(a, "gated_mix__softmax_full_mha__mixer_token_mlp__prompt_kernel" if CFG.get("std") else "mega_kernel", [1, 2, 3], 0)], path)
```
